```python
import torch

def _softmax(x, axis=-1):
    return torch.softmax(x, dim=axis)
def _gelu(x):
    return torch.nn.functional.gelu(x, approximate="tanh")
def _silu(x):
    return torch.nn.functional.silu(x)
def _sigmoid(x):
    return torch.sigmoid(x)
def _layernorm(x, axis=-1, eps=1e-5):
    m = x.mean(dim=axis, keepdim=True)
    v = x.var(dim=axis, keepdim=True, unbiased=False)
    return (x - m) / torch.sqrt(v + eps)
def _scatter_add(tgt, idx, src, axis=0):
    return tgt.clone().index_add_(axis, idx, src)
def _segment_sum(src, seg, n):
    out = torch.zeros((n,) + src.shape[1:], dtype=src.dtype)
    return out.index_add_(0, seg, src)
def _pad(x, pw):
    flat = tuple(v for pair in reversed(pw) for v in pair)
    return torch.nn.functional.pad(x, flat)

kernel_name = 'sequential_preLN__softmax_full_mha__glu_gated_geglu__prompt'

def setup_inputs():

    _w = (lambda a: (lambda t: t.to(torch.bfloat16) if t.is_floating_point() else t)(torch.as_tensor(a)))
    def _A_setup():
        B, S, D = 1, 2048, 640
        return {
            "x": _w((lambda *s: torch.randn(*s, dtype=torch.bfloat16) * 0.05)(B, S, D)),
            "wqkv": _w((lambda *s: torch.randn(*s, dtype=torch.bfloat16) * 0.05)(D, 3 * D)),
            "wo": _w((lambda *s: torch.randn(*s, dtype=torch.bfloat16) * 0.05)(D, D)),
        }
    _A_in = _A_setup()

    def _B_setup():
        B, S, Dm, Df = 1, 2048, 640, 1536
        return {
            "x": _w((lambda *s: torch.randn(*s, dtype=torch.bfloat16) * 0.05)(B, S, Dm)),
            "w_gate": _w((lambda *s: torch.randn(*s, dtype=torch.bfloat16) * 0.8)(Dm, Df) * (Dm ** -0.5)),
            "w_up": _w((lambda *s: torch.randn(*s, dtype=torch.bfloat16) * 0.8)(Dm, Df) * (Dm ** -0.5)),
            "w_down": _w((lambda *s: torch.randn(*s, dtype=torch.bfloat16) * 0.8)(Df, Dm) * (Df ** -0.5)),
        }
    _B_in = _B_setup()

    return {
        "A_x": _A_in["x"],
        "A_wqkv": _A_in["wqkv"],
        "A_wo": _A_in["wo"],
        "B_x": _B_in["x"],
        "B_w_gate": _B_in["w_gate"],
        "B_w_up": _B_in["w_up"],
        "B_w_down": _B_in["w_down"],
    }

def reference(A_x, A_wqkv, A_wo, B_x, B_w_gate, B_w_up, B_w_down):
    def _A_ref(x, wqkv, wo):
        B, S, D = x.shape
        H = 32; Dh = D // H
        qkv = (lambda x, *d: x.permute(*d))((x @ wqkv).reshape(B, S, 3, H, Dh), 2, 0, 3, 1, 4)
        q, k, v = qkv[0], qkv[1], qkv[2]
        scale = Dh ** -0.5
        scores = torch.einsum("bhqd,bhkd->bhqk", q, k) * scale
        p = _softmax(scores, axis=-1)
        o = torch.einsum("bhqk,bhkd->bhqd", p, v)
        return (lambda x, *d: x.permute(*d))(o, 0, 2, 1, 3).reshape(B, S, D) @ wo

    def _B_ref(x, w_gate, w_up, w_down):
        g = torch.einsum("bsd,df->bsf", x, w_gate)
        u = torch.einsum("bsd,df->bsf", x, w_up)
        h = _gelu(g) * u
        return torch.einsum("bsf,fd->bsd", h, w_down)

    x = A_x
    h = x + _A_ref(_layernorm(x, axis=-1), A_wqkv, A_wo)
    h2 = h + _B_ref(_layernorm(h, axis=-1), B_w_gate, B_w_up, B_w_down)
    return h2
```

```python
import sys
from asmlib import *
def wrap(body, iters=200, pre=""):
    return f"""
    s_load_dwordx2 s[4:5], s[0:1], 0
    v_lshrrev_b32 v1, 6, v0
    s_nop 0
    v_readfirstlane_b32 s10, v1
    s_lshl_b32 s11, s2, 4
    s_add_u32 s11, s11, s10
    s_lshl_b32 s11, s11, 2
""" + "".join(f"    v_mov_b32 v{i}, 0.5\n" for i in range(2,128)) + pre + f"""
    s_waitcnt lgkmcnt(0)
    s_barrier
    s_mov_b32 s12, {iters}
    s_memtime s[6:7]
    s_waitcnt lgkmcnt(0)
.p2align 6
1:
{body}
    s_sub_u32 s12, s12, 1
    s_cmp_lg_u32 s12, 0
    s_cbranch_scc1 1b
    s_memtime s[8:9]
    s_waitcnt lgkmcnt(0)
    s_sub_u32 s8, s8, s6
    v_mov_b32 v2, s8
    v_mov_b32 v3, s11
    global_store_dword v3, v2, s[4:5]
    s_waitcnt vmcnt(0)
    s_endpgm
"""
K = {}
def rep(f, n): return "".join("    " + f(i) + "\n" for i in range(n))
K['exp16'] = rep(lambda i: f"v_exp_f32 v{16+i}, v{48+i}", 16) * 4
K['fma16'] = rep(lambda i: f"v_fma_f32 v{16+i}, v{48+i}, v{48+i}, v{48+i}", 16) * 4
K['add16'] = rep(lambda i: f"v_add_f32 v{16+i}, v{48+i}, v{49+i}", 16) * 4
K['cvt16'] = rep(lambda i: f"v_cvt_pk_bf16_f32 v{16+i}, v{48+i}, v{49+i}", 16) * 4
K['pkmul16'] = rep(lambda i: f"v_pk_mul_f32 v[{16+2*i}:{17+2*i}], v[{48+2*i}:{49+2*i}], v[{48+2*i}:{49+2*i}]", 16) * 4
K['pkfma16'] = rep(lambda i: f"v_pk_fma_f32 v[{16+2*i}:{17+2*i}], v[{48+2*i}:{49+2*i}], v[{48+2*i}:{49+2*i}], v[{48+2*i}:{49+2*i}]", 16) * 4
K['perm16'] = rep(lambda i: f"v_perm_b32 v{16+i}, v{48+i}, v{49+i}, v2", 16) * 4
K['max3_16'] = rep(lambda i: f"v_max3_f32 v{16+i}, v{48+i}, v{49+i}, v{50+i}", 16) * 4
K['dot2_16'] = rep(lambda i: f"v_dot2_f32_bf16 v{16+i}, v{48+i}, v{49+i}, v{16+i}", 16) * 4
K['dot2c_16'] = rep(lambda i: f"v_dot2c_f32_bf16 v{16+i}, v{48+i}, v{49+i}", 16) * 4
K['expf16_16'] = rep(lambda i: f"v_exp_f16 v{16+i}, v{48+i}", 16) * 4
K['expfma'] = rep(lambda i: f"v_exp_f32 v{16+i}, v{48+i}\n    v_fma_f32 v{32+i}, v{64+i}, v{64+i}, v{64+i}", 16) * 2
K['expfma2'] = rep(lambda i: f"v_exp_f32 v{16+i}, v{48+i}\n    v_fma_f32 v{32+i}, v{64+i}, v{64+i}, v{64+i}\n    v_fma_f32 v{80+i}, v{64+i}, v{64+i}, v{64+i}", 16) * 2
K['mfma32x16'] = rep(lambda i: f"v_mfma_f32_32x32x16_bf16 v[{64+16*(i%4)}:{79+16*(i%4)}], v[4:7], v[8:11], v[{64+16*(i%4)}:{79+16*(i%4)}]", 16)
K['mfma32x8'] = rep(lambda i: f"v_mfma_f32_32x32x8_bf16 v[{64+16*(i%4)}:{79+16*(i%4)}], v[4:5], v[8:9], v[{64+16*(i%4)}:{79+16*(i%4)}]", 16)
K['mfma16x32'] = rep(lambda i: f"v_mfma_f32_16x16x32_bf16 v[{64+4*(i%8)}:{67+4*(i%8)}], v[4:7], v[8:11], v[{64+4*(i%8)}:{67+4*(i%8)}]", 16)
K['mfma16x16'] = rep(lambda i: f"v_mfma_f32_16x16x16_bf16 v[{64+4*(i%8)}:{67+4*(i%8)}], v[4:5], v[8:9], v[{64+4*(i%8)}:{67+4*(i%8)}]", 16)
def mix(n_mfma=4, nexp=16, ncvt=8, x8=False):
    s = ""
    for t in range(2):
        for m in range(n_mfma):
            acc = 64 + 16 * ((t*n_mfma+m) % 4)
            if x8 and m == 1:
                s += f"    v_mfma_f32_32x32x8_bf16 v[{acc}:{acc+15}], v[4:5], v[8:9], v[{acc}:{acc+15}]\n"
            else:
                s += f"    v_mfma_f32_32x32x16_bf16 v[{acc}:{acc+15}], v[4:7], v[8:11], v[{acc}:{acc+15}]\n"
            for e in range(nexp // n_mfma):
                i = m * (nexp // n_mfma) + e
                s += f"    v_exp_f32 v{16+i}, v{48+i}\n"
            for c in range(ncvt // n_mfma):
                i = m * (ncvt // n_mfma) + c
                s += f"    v_cvt_pk_bf16_f32 v{32+i}, v{48+i}, v{49+i}\n"
    return s
K['mix_4_16_8'] = mix()
K['mix_4_16_8_x8'] = mix(x8=True)
K['mix_4_16_0'] = mix(ncvt=0)
K['mix_4_0_8'] = mix(nexp=0)
K['mix_4_0_24'] = mix(nexp=0, ncvt=16)
K['mix_4_8_8'] = mix(nexp=8)
K['mix_4_12_8'] = mix(nexp=12)
def nomfma():
    s = ""
    for t in range(2):
        for m in range(4):
            for e in range(4):
                i = m*4+e
                s += f"    v_exp_f32 v{16+i}, v{48+i}\n"
            for c in range(2):
                i = m*2+c
                s += f"    v_cvt_pk_bf16_f32 v{32+i}, v{48+i}, v{49+i}\n"
    return s
K['mix_0_16_8'] = nomfma()
bodies = {k + '_kernel': (wrap(v), 128, 128) for k, v in K.items()}
build_simple('mb1.s', bodies, ka=16)
open('mb1_names.txt', 'w').write("\n".join(bodies.keys()))
```

```python
from asmlib import *
from mb1_gen import wrap, rep
K = {}
def att(n):
    s = ""
    for t in range(n):
        kinds = ['x16','x8','sm','sm']
        for m, kind in enumerate(kinds):
            acc = 64 + 16 * ((t*4+m) % 4)
            if kind == 'x16': s += f"    v_mfma_f32_32x32x16_bf16 v[{acc}:{acc+15}], v[4:7], v[8:11], v[{acc}:{acc+15}]\n"
            elif kind == 'x8': s += f"    v_mfma_f32_32x32x8_bf16 v[{acc}:{acc+15}], v[4:5], v[8:9], v[{acc}:{acc+15}]\n"
            else: s += f"    v_smfmac_f32_32x32x32_bf16 v[{acc}:{acc+15}], v[4:7], v[8:15], v3\n"
            for e in range(4): s += f"    v_exp_f32 v{16+m*4+e}, v{48+m*4+e}\n"
    return s
def gemm(n):
    s = ""
    for t in range(n):
        acc = 64 + 16 * (t % 4)
        s += f"    v_mfma_f32_32x32x16_bf16 v[{acc}:{acc+15}], v[4:7], v[8:11], v[{acc}:{acc+15}]\n"
        s += f"    v_fma_f32 v16, v17, v18, v19\n    v_fma_f32 v20, v17, v18, v19\n"
    return s
pre = "    v_mov_b32 v3, 0xdddddddd\n"
bodies = {}
bodies['att64_once_kernel'] = (wrap(att(64), iters=1, pre=pre), 128, 128)
bodies['att8_x8_kernel'] = (wrap(att(8), iters=8, pre=pre), 128, 128)
bodies['gemm320_once_kernel'] = (wrap(gemm(320), iters=1, pre=pre), 128, 128)
bodies['gemm32_x10_kernel'] = (wrap(gemm(32), iters=10, pre=pre), 128, 128)
bodies['valu2048_once_kernel'] = (wrap(rep(lambda i: f"v_fma_f32 v{16+i%16}, v17, v18, v19", 2048), iters=1, pre=pre), 128, 128)
bodies['valu256_x8_kernel'] = (wrap(rep(lambda i: f"v_fma_f32 v{16+i%16}, v17, v18, v19", 256), iters=8, pre=pre), 128, 128)
bodies['evict_kernel'] = (wrap(rep(lambda i: f"v_fma_f32 v{16+i%16}, v17, v18, v19", 12000), iters=1, pre=pre), 128, 128)
build_simple('mb8.s', bodies, ka=16)
open('mb8_names.txt', 'w').write("\n".join(bodies.keys()))
```

```python
import re

class Asm:
    def __init__(self):
        self.lines = []
        self.uid = 0
    def __call__(self, s):
        for l in s.split('\n'):
            l = l.strip()
            if l:
                self.lines.append(l)
    def label(self, name):
        self.lines.append(name + ':')
    def new_label(self, p='L'):
        self.uid += 1
        return f'{p}_{self.uid}'
    def text(self):
        out = []
        for l in self.lines:
            if l.endswith(':') or l.startswith('.'):
                out.append(l)
            else:
                out.append('    ' + l)
        return '\n'.join(out) + '\n'

def vr(a, n=1):
    return f'v{a}' if n == 1 else f'v[{a}:{a+n-1}]'
def sr(a, n=1):
    return f's{a}' if n == 1 else f's[{a}:{a+n-1}]'
def ar(a, n=1):
    return f'a{a}' if n == 1 else f'a[{a}:{a+n-1}]'

_reg = re.compile(r'^(-|\|)?(abs\()?([vsa])(\d+|\[(\d+):(\d+)\])\)?\|?$')
def regs(op):
    op = op.strip()
    if op in ('vcc', 'vcc_lo', 'vcc_hi'): return {('s', 'vcc')}
    if op in ('exec', 'exec_lo', 'exec_hi'): return {('s', 'exec')}
    if op == 'm0': return {('s', 'm0')}
    m = _reg.match(op)
    if not m: return set()
    k = m.group(3)
    if m.group(5) is not None:
        return {(k, i) for i in range(int(m.group(5)), int(m.group(6)) + 1)}
    return {(k, int(m.group(4)))}

TRANS = ('v_exp_f32', 'v_log_f32', 'v_rcp_f32', 'v_rsq_f32', 'v_sqrt_f32', 'v_sin_f32', 'v_cos_f32', 'v_rcp_iflag_f32')
def passes(op):
    if '4x4x4' in op: return 2
    if '16x16x' in op and '4b' not in op: return 4
    if '2b' in op: return 16
    if '32x32x' in op: return 8
    raise ValueError(op)

class Ins:
    def __init__(self, text):
        self.text = text
        t = text.split(';')[0].strip()
        parts = t.split(None, 1)
        self.op = parts[0]
        rest = parts[1] if len(parts) > 1 else ''
        ops = [o.strip() for o in rest.split(',')] if rest else []
        if ops:
            last = ops[-1].split()
            self.mods = ' '.join(last[1:])
            ops[-1] = last[0] if last else ''
        else:
            self.mods = ''
        self.ops = ops
        op = self.op
        self.is_mfma = op.startswith('v_mfma') or op.startswith('v_smfmac')
        self.is_valu = op.startswith('v_') and not self.is_mfma
        self.is_trans = any(op.startswith(x) for x in TRANS)
        self.is_vmem = op.startswith(('buffer_', 'global_', 'flat_'))
        self.is_ds = op.startswith('ds_')
        self.is_salu = op.startswith('s_')
        self.is_dpp = 'row_' in self.mods or 'quad_perm' in self.mods or 'row_' in text or 'wave_' in self.mods or op.endswith('_dpp')
        self.is_perml = op.startswith('v_permlane')
        self.is_dot = op.startswith('v_dot')
        w, r = set(), set()
        self.A = self.B = self.C = set()
        self.store_data = set()
        R = [regs(o) for o in ops]
        if self.is_mfma:
            w = R[0]; self.A = R[1]; self.B = R[2]
            if op.startswith('v_smfmac'):
                self.C = R[0]; self.B = R[2] | R[3]
            else:
                self.C = R[3]
            r = self.A | self.B | self.C
            self.np = passes(op)
        elif self.is_valu:
            if op.startswith('v_cmp'):
                w = R[0]; r = set().union(*R[1:])
                if op.startswith('v_cmpx'): w = w | {('s', 'exec')}
            elif op.startswith('v_permlane') and 'swap' in op:
                w = R[0] | R[1]; r = R[0] | R[1]
            elif op.startswith(('v_add_co', 'v_sub_co', 'v_addc_co', 'v_subb_co', 'v_subrev_co', 'v_div_scale', 'v_mad_u64', 'v_mad_i64')):
                w = R[0] | R[1]; r = set().union(*R[2:])
            elif op == 'v_nop':
                pass
            else:
                w = R[0]; r = set().union(*R[1:]) if len(R) > 1 else set()
                if op.startswith(('v_fmac', 'v_dot2c', 'v_pk_fmac', 'v_writelane')) or 'UNUSED_PRESERVE' in text: r = r | R[0]
                if op.startswith('v_cndmask') and len(ops) == 3: r = r | {('s', 'vcc')}
        elif self.is_vmem:
            lds = ' lds' in (' ' + self.mods) or '_lds_' in op
            if '_load' in op and not lds:
                w = R[0]; r = set().union(*R[1:])
            elif lds:
                r = set().union(*R) | {('s', 'm0')}
            elif 'atomic' in op:
                r = set().union(*R)
                if 'sc0' in self.mods and op.startswith('global'): w = R[0]
                if 'sc0' in self.mods and op.startswith('buffer'): w = R[0]
            elif '_store' in op:
                r = set().union(*R)
                d = R[0] if op.startswith('buffer') else R[1]
                if 'x3' in op or 'x4' in op: self.store_data = d
            else:
                r = set().union(*R) if R else set()
        elif self.is_ds:
            if op.startswith(('ds_read', 'ds_bpermute', 'ds_permute', 'ds_swizzle')):
                w = R[0]; r = set().union(*R[1:])
            else:
                r = set().union(*R)
        elif self.is_salu:
            if op.startswith(('s_cmp', 's_waitcnt', 's_barrier', 's_nop', 's_branch', 's_cbranch', 's_endpgm', 's_setprio', 's_sleep', 's_bitcmp')):
                r = set().union(*R) if R else set()
            else:
                w = R[0] if R else set(); r = set().union(*R[1:]) if len(R) > 1 else set()
                if 'saveexec' in op: w = w | {('s', 'exec')}
        self.w, self.r = w, r
        self.ws = 1
        if op == 's_nop': self.ws = int(ops[0], 0) + 1

def need(p, c):
    n = 0
    vw = {x for x in p.w if x[0] in 'va'}
    sw = {x for x in p.w if x[0] == 's'}
    if p.is_valu:
        if c.is_mfma and vw & c.r: n = max(n, 2)
        if c.is_mfma and ('s', 'exec') in sw: n = max(n, 4)
        if c.is_valu and c.is_dpp and vw & c.r: n = max(n, 2)
        if c.is_valu and c.is_dpp and ('s', 'exec') in sw: n = max(n, 5)
        if c.is_perml and vw & c.r: n = max(n, 2)
        if c.op.startswith(('v_readlane', 'v_readfirstlane')) and vw & c.r: n = max(n, 1)
        if c.is_vmem and sw & c.r: n = max(n, 5)
        if c.is_valu and sw & c.r:
            n = max(n, 4 if c.op.startswith(('v_readlane', 'v_writelane', 'v_div_fmas')) else 2)
        if c.is_salu and sw & c.r: n = max(n, 1)
        if p.is_trans and (c.is_valu and not c.is_trans) and vw & c.r: n = max(n, 1)
        if p.is_trans and (c.is_vmem or c.is_ds) and vw & c.r: n = max(n, 1)
        if p.is_trans and c.is_mfma and vw & c.r: n = max(n, 3)
        if ('sdwa' in p.op or ('op_sel' in p.mods and not p.op.startswith('v_pk_'))) and c.is_valu and vw & (c.r | c.w): n = max(n, 1)
        if p.is_dot and vw & (c.r | c.w) and not (c.op == p.op and not (vw & (c.r - c.w))): n = max(n, 3)
    if p.is_salu and ('s', 'm0') in p.w and ('s', 'm0') in c.r and (c.is_vmem or c.is_ds): n = max(n, 1)
    if p.store_data and (p.store_data & c.w): n = max(n, 2 if c.is_valu else 1)
    if p.is_mfma:
        k = {2: 0, 4: 1, 8: 2, 16: 3}[p.np]
        if c.is_mfma:
            if p.w & (c.A | c.B): n = max(n, (5, 8, 12, 20)[k])
            if p.w & c.C:
                if p.w == c.C and p.np == c.np: n = max(n, (2, 0, 0, 0)[k])
                else: n = max(n, (4, 6, 10, 18)[k])
            if (p.w & c.w) and not (p.w & c.C) and p.np > c.np: n = max(n, (4, 6, 10, 18)[k])
        else:
            if p.w & (c.r | c.w) and (c.is_valu or c.is_vmem or c.is_ds): n = max(n, (5, 8, 12, 20)[k])
            if c.is_valu and (p.C & c.w): n = max(n, (1, 3, 7, 15)[k])
    return n

def hazard_pass(lines, auto=True, name=''):
    out = []
    labels = {}
    W = 24
    def check(hist, ins):
        dist = 0; req = 0
        for p in reversed(hist[-W:]):
            nn = need(p, ins)
            if nn > dist: req = max(req, nn - dist)
            dist += p.ws
            if dist > 24: break
        return req
    hist = []
    seq = []
    for l in lines:
        if l.endswith(':'):
            labels[l[:-1]] = len(seq)
            out.append(l); continue
        if l.startswith('.') or l.startswith(';'):
            out.append(l); continue
        ins = Ins(l)
        req = check(hist, ins)
        if req:
            if not auto: raise RuntimeError(f'hazard before: {l}')
            while req > 0:
                k = min(req, 16)
                nop = Ins(f's_nop {k-1}')
                out.append(nop.text); hist.append(nop); seq.append(nop); req -= k
        out.append(l); hist.append(ins); seq.append(ins)
        if ins.op in ('s_branch', 's_endpgm'):
            hist = []
    for i, ins in enumerate(seq):
        if ins.op.startswith(('s_cbranch', 's_branch')):
            tgt = ins.ops[0]
            if tgt in labels:
                h = seq[max(0, i - W):i + 1]
                j = labels[tgt]
                for c in seq[j:j + W]:
                    req = check(h, c)
                    if req: raise RuntimeError(f'{name}: hazard across branch to {tgt} at "{c.text}" needs {req} more')
                    h = h + [c]
                    if c.op in ('s_branch', 's_endpgm'): break
    return out
```

```python
from asm import *
NAME = 'sequential_preLN__softmax_full_mha__glu_gated_geglu__prompt'
def _al(x, a=4096): return (x + a - 1) // a * a
QF = 0
KF = QF + 16*64*2560
VF = KF + 16*64*2560
OF = VF + 32*64*1536
HF = OF + 64*40*1024
GF = HF + 64*40*1024
WOF = GF + 64*96*1024
WGF = _al(WOF + 8*40*2560)
WDF = WGF + 16*40*6144
WBAR = _al(WDF + 8*96*2560)
MEANX = WBAR + 4096
MEANH = MEANX + 8192
SQP = MEANH + 8192
WS_END = SQP + 16*2048*4
WS_SIZE = _al(WS_END + 65536)
WSBASE = 0
KA = dict(x=0, wqkv=8, wo=16, bx=24, wg=32, wu=40, wd=48, out=56, dbg=64, ws=72)
SZ = dict(x=2048*640*2, wqkv=640*1920*2, wo=640*640*2, wg=640*1536*2, wu=640*1536*2, wd=1536*640*2, out=2048*640*2, ws=WS_SIZE)
QSCALE = 1.4426950408889634 * 20 ** -0.5
import struct
def f2u(x): return struct.unpack('<I', struct.pack('<f', x))[0]
def fl(x): return hex(f2u(x))

def prologue(a, bufs, end_label, nwg=256, wsbase=None):
    if wsbase is None: wsbase = WSBASE
    a(f's_cmp_ge_u32 s2, {nwg}')
    a(f's_cbranch_scc1 {end_label}')
    for i, (n, r) in enumerate(bufs):
        a(f's_load_dwordx2 s[{40+2*i}:{41+2*i}], s[0:1], {KA[n]}')
    a('v_lshrrev_b32 v1, 6, v0')
    a('v_and_b32 v0, 63, v0')
    a('v_readfirstlane_b32 s3, v1')
    a('s_waitcnt lgkmcnt(0)')
    for i, (n, r) in enumerate(bufs):
        if n == 'ws' and wsbase:
            a(f's_add_u32 s{r}, s{40+2*i}, {wsbase}')
            a(f's_addc_u32 s{r+1}, s{41+2*i}, 0')
        else:
            a(f's_mov_b32 s{r}, s{40+2*i}')
            a(f's_mov_b32 s{r+1}, s{41+2*i}')
        a(f's_mov_b32 s{r+2}, {SZ[n]}')
        a(f's_mov_b32 s{r+3}, 0x20000')

def swap23(a, dst, src, t):
    a(f'v_lshrrev_b32 v{t}, 1, v{src}')
    a(f'v_xor_b32 v{t}, v{t}, v{src}')
    a(f'v_and_b32 v{t}, 4, v{t}')
    a(f'v_lshl_or_b32 v{t}, v{t}, 1, v{t}')
    a(f'v_xor_b32 v{dst}, v{t}, v{src}')

def kernel_wrap(name, lines, vgpr, accum=None, sgpr=96):
    if accum is None: accum = (vgpr + 3) // 4 * 4
    body = hazard_pass(lines, name=name)
    t = f'.text\n.globl {name}\n.p2align 8\n.type {name},@function\n{name}:\n'
    for l in body:
        t += (l if (l.endswith(':') or l.startswith('.')) else '    ' + l) + '\n'
    kd = f""".section .rodata,"a"
.p2align 6
.amdhsa_kernel {name}
  .amdhsa_next_free_vgpr {vgpr}
  .amdhsa_next_free_sgpr {sgpr}
  .amdhsa_accum_offset {accum}
  .amdhsa_group_segment_fixed_size 0
  .amdhsa_kernarg_size 80
  .amdhsa_user_sgpr_count 2
  .amdhsa_user_sgpr_kernarg_segment_ptr 1
  .amdhsa_system_sgpr_workgroup_id_x 1
.end_amdhsa_kernel
"""
    return t, kd

def prep_lane_consts(a, v, t):
    a(f'v_lshrrev_b32 v{v}, 3, v0')
    a(f'v_and_b32 v{t}, 2, v{v}')
    a(f'v_lshlrev_b32 v{t}, 1, v{t}')
    a(f'v_and_b32 v{v+1}, 7, v0')
    a(f'v_xor_b32 v{v+1}, v{v+1}, v{t}')
    a(f'v_lshlrev_b32 v{v+1}, 4, v{v+1}')
    a(f'v_lshrrev_b32 v{v+3}, 5, v0')
    a(f'v_bfe_u32 v{v+4}, v0, 4, 1')
    a(f'v_and_b32 v{v+5}, 15, v0')
    a(f'v_bfe_u32 v{t}, v0, 2, 2')
    a(f'v_lshl_add_u32 v{v+2}, v{v+3}, 3, v{t}')
    a(f'v_lshlrev_b32 v{v+2}, 7, v{v+2}')
    a(f'v_lshrrev_b32 v{t}, 1, v{t}')
    a(f'v_lshl_add_u32 v{v+2}, v{t}, 6, v{v+2}')
    a(f'v_lshl_add_u32 v{v+2}, v{v+4}, 5, v{v+2}')
    a(f'v_and_b32 v{t}, 3, v0')
    a(f'v_lshl_add_u32 v{v+2}, v{t}, 3, v{v+2}')
```

```python
from common import *

def prep_unit_issue(a, srd, v, vt, s_row0, s_row1, s_col, s_lds, ld, rowmul_v=None):
    pass

def gen_spare(a, L_end):
    a('s_lshl_b32 s21, s20, 3')
    a('s_add_u32 s21, s21, s3')
    a('s_lshl_b32 s22, s21, 6')
    a('v_add_u32 v2, s22, v0')
    a('v_mul_u32_u24 v2, 384, v2')
    for i in range(4): a(f'v_mov_b32 v{4+i}, 0x3f803f80')
    a(f's_mov_b32 s23, {VF + 320}')
    a('buffer_store_dwordx4 v[4:7], v2, s[8:11], s23 offen')
    V = 16
    prep_lane_consts(a, V, 8)
    swap23(a, 22, V+5, 8)
    a('s_lshl_b32 s30, s3, 13')
    for it in range(4):
        Lskip = a.new_label('sp_skip')
        a(f's_add_u32 s31, s21, {128*it}')
        if it == 3:
            a('s_cmp_ge_u32 s31, 400'); a(f's_cbranch_scc1 {Lskip}')
        a('s_mul_i32 s32, s31, 6554'); a('s_lshr_b32 s32, s32, 16')
        a('s_mul_i32 s33, s32, 10'); a('s_sub_u32 s33, s31, s33')
        a('s_cmp_lt_u32 s32, 32')
        a('s_mul_i32 s34, s32, 20')
        a('s_mul_i32 s35, s32, 80')
        a(f's_sub_u32 s35, s35, {80*32-16}')
        a('s_cmp_lt_u32 s32, 32')
        a('s_cselect_b32 s34, s34, s35')
        a('s_cselect_b32 s35, 4, 20')
        a(f'v_lshrrev_b32 v8, 2, v{V}')
        a('v_mul_lo_u32 v8, v8, s35')
        a(f'v_and_b32 v9, 3, v{V}')
        a('v_add_u32 v8, v8, v9')
        a('v_mul_u32_u24 v8, 1280, v8')
        a(f'v_add_u32 v8, v8, v{V+1}')
        a('s_mul_i32 s36, s34, 1280')
        a('s_lshl_b32 s37, s33, 7')
        a('s_add_u32 s36, s36, s37')
        a('s_mul_i32 s37, s35, 2560')
        a('s_add_u32 s37, s37, s36')
        a(f's_add_u32 m0, s30, {it*2048}')
        a('buffer_load_dwordx4 v8, s[24:27], s36 offen lds')
        a(f's_add_u32 m0, s30, {it*2048+1024}')
        a('buffer_load_dwordx4 v8, s[24:27], s37 offen lds')
        for z in range(2):
            a(f's_lshl_b32 s38, s33, 2')
            a(f's_add_u32 s38, s38, {2*z}')
            a(f'v_add_u32 v9, s38, v{V+4}')
            a('v_mul_u32_u24 v10, 205, v9'); a('v_lshrrev_b32 v10, 10, v10')
            a('v_mul_u32_u24 v11, 5, v10'); a('v_sub_u32 v11, v9, v11')
            a('v_mul_u32_u24 v10, 40, v10'); a('v_add_u32 v10, s32, v10')
            a('v_mul_u32_u24 v10, 2560, v10')
            a('v_lshrrev_b32 v12, 1, v11')
            a('v_lshl_add_u32 v10, v12, 10, v10')
            a('v_and_b32 v12, 1, v11')
            a('v_lshl_add_u32 v10, v12, 8, v10')
            a('v_lshrrev_b32 v12, 2, v11')
            a('v_sub_u32 v12, 9, v12')
            a(f'v_lshlrev_b32 v12, v12, v{V+3}')
            a('v_add_u32 v10, v10, v12')
            a(f'v_lshl_add_u32 v{24+z}, v22, 4, v10')
        a(f'v_add_u32 v13, s30, v{V+2}')
        a('v_xor_b32 v14, 64, v13')
        a('s_waitcnt vmcnt(0)')
        a(f'ds_read_b64_tr_b16 v[28:29], v13 offset:{it*2048}')
        a(f'ds_read_b64_tr_b16 v[30:31], v13 offset:{it*2048+512}')
        a(f'ds_read_b64_tr_b16 v[32:33], v14 offset:{it*2048}')
        a(f'ds_read_b64_tr_b16 v[34:35], v14 offset:{it*2048+512}')
        a(f's_mov_b32 s38, {WOF}')
        a('s_waitcnt lgkmcnt(0)')
        a('buffer_store_dwordx4 v[28:31], v24, s[8:11], s38 offen')
        a('buffer_store_dwordx4 v[32:35], v25, s[8:11], s38 offen')
        if it == 3: a.label(Lskip)
    a('s_sub_u32 s32, s21, 64')
    a('s_cmp_ge_u32 s32, 40')
    a(f's_cbranch_scc1 {L_end}')
    a('s_mul_i32 s34, s32, 20')
    a('s_mul_i32 s35, s32, 80')
    a(f's_sub_u32 s35, s35, {80*32-16}')
    a('s_cmp_lt_u32 s32, 32')
    a('s_cselect_b32 s34, s34, s35')
    a('s_cselect_b32 s35, 4, 20')
    a('v_lshrrev_b32 v8, 4, v0')
    a('v_mul_lo_u32 v8, v8, s35')
    a('v_bfe_u32 v9, v0, 2, 2')
    a('v_add_u32 v8, v8, v9')
    a('v_mul_u32_u24 v8, 1280, v8')
    a('v_and_b32 v9, 3, v0')
    a('v_lshl_add_u32 v8, v9, 4, v8')
    a('s_mul_i32 s36, s34, 1280')
    for i in range(20):
        a(f'buffer_load_dwordx4 v[{40+4*i}:{43+4*i}], v8, s[24:27], s36 offen offset:{64*i}')
    a('v_mov_b32 v10, 0'); a('v_mov_b32 v11, 0'); a('v_mov_b32 v12, 0'); a('v_mov_b32 v13, 0')
    a('v_mov_b32 v14, 0x3f803f80')
    a('s_waitcnt vmcnt(0)')
    for i in range(80):
        a(f'v_dot2_f32_bf16 v{10+(i&3)}, v{40+i}, v14, v{10+(i&3)}')
    a('v_add_f32 v10, v10, v11'); a('v_add_f32 v12, v12, v13'); a('v_add_f32 v10, v10, v12')
    a('v_add_f32_dpp v10, v10, v10 quad_perm:[1,0,3,2] row_mask:0xf bank_mask:0xf')
    a('v_add_f32_dpp v10, v10, v10 quad_perm:[2,3,0,1] row_mask:0xf bank_mask:0xf')
    a(f'v_mul_f32 v10, {fl(1/640)}, v10')
    a('v_cvt_pk_bf16_f32 v10, v10, v10')
    a('v_lshrrev_b32 v9, 2, v0'); a('v_lshlrev_b32 v9, 1, v9')
    a('s_lshl_b32 s36, s32, 5'); a(f's_add_u32 s36, s36, {WBAR}')
    a('buffer_store_short v10, v9, s[8:11], s36 offen')
    a(f's_branch {L_end}')

def gen_p1(R=4):
    a = Asm()
    S = 10; SLOT = 32768
    Lend, Lspare, Lload, Lv = 'p1_end', 'p1_spare', 'p1_load', 'p1_vpath'
    prologue(a, [('ws', 8), ('x', 12), ('wqkv', 16), ('wo', 24)], Lend)
    a('s_and_b32 s6, s2, 7'); a('s_lshr_b32 s7, s2, 3')
    a('s_lshl_b32 s20, s6, 1'); a('s_and_b32 s21, s7, 1'); a('s_add_u32 s20, s20, s21')
    a('s_cmp_ge_u32 s7, 30'); a(f's_cbranch_scc1 {Lspare}')
    a('s_and_b32 s22, s6, 3'); a('s_lshl_b32 s22, s22, 2')
    a('s_lshr_b32 s23, s6, 2')
    a('s_and_b32 s4, s7, 3'); a('s_add_u32 s4, s4, s22')
    a('s_lshr_b32 s5, s7, 2'); a('s_lshl_b32 s28, s23, 3'); a('s_add_u32 s5, s5, s28')
    a('s_lshl_b32 s28, s23, 1'); a('s_add_u32 s28, s28, s22'); a('s_add_u32 s28, s28, s21')
    a('s_cmp_ge_u32 s7, 28')
    a('s_cselect_b32 s4, s28, s4'); a('s_cselect_b32 s5, 7, s5')
    a('s_cmp_ge_u32 s3, 4'); a(f's_cbranch_scc1 {Lload}')
    a('s_cmp_ge_u32 s5, 10'); a(f's_cbranch_scc1 {Lv}')
    gen_p1_compute(a, R, S, SLOT, False, Lend)
    a.label(Lv)
    gen_p1_compute(a, R, S, SLOT, True, Lend)
    a.label(Lload)
    a('s_sub_u32 s3, s3, 4')
    a('v_lshrrev_b32 v2, 3, v0')
    a('s_lshl_b32 s20, s3, 3'); a('v_add_u32 v3, s20, v2')
    a('v_mul_u32_u24 v3, 1280, v3')
    a('s_and_b32 s20, s3, 1'); a('s_lshl_b32 s20, s20, 2')
    a('v_lshrrev_b32 v4, 4, v0'); a('v_add_u32 v4, s20, v4')
    a('v_and_b32 v5, 7, v0'); a('v_xor_b32 v4, v4, v5')
    a('v_lshl_add_u32 v3, v4, 4, v3')
    a('v_bfe_u32 v4, v0, 2, 2'); a('s_lshl_b32 s20, s3, 2'); a('v_add_u32 v4, s20, v4')
    a('v_mul_u32_u24 v4, 3840, v4')
    a('v_lshrrev_b32 v5, 4, v0'); a('v_lshl_add_u32 v4, v5, 6, v4')
    a('v_and_b32 v5, 3, v0'); a('v_lshl_add_u32 v4, v5, 4, v4')
    a(f's_mul_i32 s20, s4, {128*1280}')
    a('s_lshl_b32 s21, s5, 8')
    a('s_lshl_b32 s22, s3, 10')
    def issue(st):
        slot = (st % R) * SLOT
        for i in range(4):
            a(f's_add_u32 s23, s20, {i*32*1280 + st*128}')
            a(f's_add_u32 m0, s22, {slot + i*4096}')
            a('buffer_load_dwordx4 v3, s[12:15], s23 offen lds')
            a(f's_add_u32 s28, s21, {(st*64 + 16*i)*3840}')
            a(f's_add_u32 m0, s22, {slot + 16384 + i*4096}')
            a('buffer_load_dwordx4 v4, s[16:19], s28 offen lds')
    issued = 0
    for st in range(min(R, S)): issue(st); issued += 1
    for st in range(S):
        a(f's_waitcnt vmcnt({8*(issued - st - 1)})')
        a('s_barrier')
        if st >= 1 and st - 1 + R < S:
            issue(st - 1 + R); issued += 1
    a('s_endpgm')
    a.label(Lspare)
    gen_spare(a, Lend)
    a.label(Lend)
    a('s_endpgm')
    return a.lines, 176, R*SLOT

def gen_p1_compute(a, R, S, SLOT, vpath, Lend):
    XB = lambda st, t, i: 8 + st*8 + t*4 + i
    WA = lambda st, t: 24 + st*2 + t
    SA = 28
    ACC = lambda u, t: 64 + 16*(2*u + t)
    XF = lambda p, t: 128 + p*8 + t*4
    WF = lambda p, u: 144 + p*8 + u*4
    SUM, SQ, CS, ONES = 160, 164, 168, 172
    a('s_and_b32 s6, s3, 1'); a('s_lshr_b32 s7, s3, 1')
    a('s_lshl_b32 s20, s6, 1'); a('s_add_u32 s20, s20, s7'); a('s_xor_b32 s21, s20, 1')
    a('s_lshl_b32 s22, s7, 1'); a('s_add_u32 s22, s22, s6'); a('s_xor_b32 s23, s22, 1')
    a('v_and_b32 v2, 31, v0')
    a('v_lshrrev_b32 v3, 5, v0')
    if vpath: swap23(a, 4, 2, 32)
    else: a('v_mov_b32 v4, v2')
    a('v_bfe_u32 v5, v4, 1, 3'); a('v_xor_b32 v5, v5, v3')
    a('v_lshlrev_b32 v5, 4, v5'); a('v_lshl_add_u32 v5, v4, 7, v5')
    for t in range(2):
        a(f's_lshl_b32 s28, s{20+t}, 12')
        a(f'v_add_u32 v{XB(0,t,0)}, s28, v5')
        for i in range(1, 4): a(f'v_xor_b32 v{XB(0,t,i)}, {32*i}, v{XB(0,t,0)}')
        for i in range(4): a(f'v_add_u32 v{XB(1,t,i)}, 0x10000, v{XB(0,t,i)}')
    a('v_bfe_u32 v5, v0, 2, 2'); a('v_lshlrev_b32 v5, 6, v5')
    a('v_lshl_add_u32 v5, v3, 11, v5')
    a('v_bfe_u32 v6, v0, 4, 1'); a('v_lshl_add_u32 v5, v6, 5, v5')
    if vpath:
        a('v_and_b32 v6, 3, v0'); a('v_lshl_add_u32 v5, v6, 3, v5')
    else:
        a('v_and_b32 v6, 1, v0'); a('v_lshl_add_u32 v5, v6, 4, v5')
        a('v_bfe_u32 v6, v0, 1, 1'); a('v_lshl_add_u32 v5, v6, 3, v5')
    for u in range(2):
        a(f's_lshl_b32 s28, s{22+u}, 8'); a('s_add_u32 s28, s28, 16384')
        a(f'v_add_u32 v{WA(0,u)}, s28, v5')
        a(f'v_add_u32 v{WA(1,u)}, 0x10000, v{WA(0,u)}')
    if not vpath:
        a('s_cmp_ge_u32 s5, 5'); a('s_cselect_b32 s28, 5, 0'); a('s_sub_u32 s28, s5, s28')
        a('s_lshl_b32 s28, s28, 4')
        a('s_mov_b32 s30, 0x32410')
        for u in range(2):
            for q in range(2):
                a(f's_lshl_b32 s29, s{22+u}, 2'); a('s_add_u32 s29, s29, s28'); a(f's_add_u32 s29, s29, {2*q}')
                a('v_add_u32 v5, s29, v3')
                a('v_mul_u32_u24 v6, 205, v5'); a('v_lshrrev_b32 v6, 10, v6')
                a('v_mul_u32_u24 v7, 5, v6'); a('v_sub_u32 v5, v5, v7'); a('v_lshlrev_b32 v5, 2, v5')
                a('v_bfe_u32 v5, s30, v5, 4')
                a(f'v_mul_u32_u24 v6, {64*2560}, v6')
                a('v_lshl_add_u32 v6, v5, 9, v6')
                a(f'v_lshl_add_u32 v{SA+2*u+q}, v2, 4, v6')
        a('s_cmp_ge_u32 s5, 5'); a(f's_cselect_b32 s30, {KF}, {QF}')
        for t in range(2):
            a(f's_lshl_b32 s29, s4, 2'); a(f's_add_u32 s29, s29, s{20+t}'); a('s_mul_i32 s29, s29, 2560')
            a(f's_add_u32 s{32+t}, s29, s30')
    else:
        for u in range(2):
            a('s_sub_u32 s28, s5, 10'); a('s_lshl_b32 s28, s28, 7'); a(f's_lshl_b32 s29, s{22+u}, 5'); a('s_add_u32 s28, s28, s29')
            a('v_add_u32 v5, s28, v2')
            a('v_mul_u32_u24 v6, 3277, v5'); a('v_lshrrev_b32 v6, 16, v6')
            a('v_mul_u32_u24 v7, 20, v6'); a('v_sub_u32 v5, v5, v7')
            a(f'v_mul_u32_u24 v6, {64*1536}, v6')
            a('v_lshl_add_u32 v6, v5, 4, v6')
            a('v_mul_u32_u24 v7, 384, v3')
            a(f'v_add_u32 v{SA+u}, v6, v7')
        for t in range(2):
            a(f's_lshl_b32 s29, s4, 2'); a(f's_add_u32 s29, s29, s{20+t}'); a('s_mul_i32 s29, s29, 1536')
            a(f's_add_u32 s{32+t}, s29, {VF}')
    for r in range(64, 128): a(f'v_mov_b32 v{r}, 0')
    for r in range(SUM, SUM+12): a(f'v_mov_b32 v{r}, 0')
    a(f'v_mov_b32 v{ONES}, 0x3f803f80'); a(f'v_mov_b32 v{ONES+1}, 0x3f803f80')
    def reads(g):
        st, i = g >> 2, g & 3; p = g & 1
        slot = (st % R) * SLOT; hi = slot >> 16; off = slot & 0xffff
        rd = []
        rd.append(f'ds_read_b128 {vr(XF(p,0),4)}, v{XB(hi,0,i)} offset:{off}')
        rd.append(f'ds_read_b64_tr_b16 {vr(WF(p,0),2)}, v{WA(hi,0)} offset:{off + i*4096}')
        rd.append(f'ds_read_b64_tr_b16 {vr(WF(p,0)+2,2)}, v{WA(hi,0)} offset:{off + i*4096 + 1024}')
        rd.append(f'ds_read_b128 {vr(XF(p,1),4)}, v{XB(hi,1,i)} offset:{off}')
        rd.append(f'ds_read_b64_tr_b16 {vr(WF(p,1),2)}, v{WA(hi,1)} offset:{off + i*4096}')
        rd.append(f'ds_read_b64_tr_b16 {vr(WF(p,1)+2,2)}, v{WA(hi,1)} offset:{off + i*4096 + 1024}')
        return rd
    def mm(u, t, p):
        w, x, d = vr(WF(p,u),4), vr(XF(p,t),4), vr(ACC(u,t),16)
        return f'v_mfma_f32_32x32x16_bf16 {d}, {x}, {w}, {d}' if vpath else f'v_mfma_f32_32x32x16_bf16 {d}, {w}, {x}, {d}'
    def small(p, k):
        o = vr(ONES,2); x = vr(XF(p,0)+2*k,2); w = vr(WF(p,0)+2*k,2)
        return [f'v_mfma_f32_4x4x4_16b_bf16 {vr(SUM,4)}, {o}, {x}, {vr(SUM,4)}',
                f'v_mfma_f32_4x4x4_16b_bf16 {vr(SQ,4)}, {x}, {x}, {vr(SQ,4)}',
                f'v_mfma_f32_4x4x4_16b_bf16 {vr(CS,4)}, {o}, {w}, {vr(CS,4)}']
    a('s_barrier')
    for l in reads(0): a(l)
    NG = 4*S
    for g in range(NG):
        p = g & 1
        rd = reads(g+1) if g + 1 < NG else []
        a('s_waitcnt lgkmcnt(0)')
        a(mm(0,0,p))
        if (g & 3) == 3 and g + 1 < NG: a('s_barrier')
        for l in rd[0:2]: a(l)
        a(mm(0,1,p))
        for l in rd[2:4]: a(l)
        a(mm(1,0,p))
        for l in rd[4:6]: a(l)
        a(mm(1,1,p))
        for l in small(p,0) + small(p,1): a(l)
    ST = ((S % R) * SLOT)
    TM, TR, CSL = ST, ST + 512, ST + 1024
    a('v_and_b32 v5, 3, v0')
    a(f'v_cmp_eq_u32 vcc, 1, v5'); a(f'v_cndmask_b32 v{SQ}, v{SQ}, v{SQ+1}, vcc')
    a(f'v_cmp_eq_u32 vcc, 2, v5'); a(f'v_cndmask_b32 v{SQ}, v{SQ}, v{SQ+2}, vcc')
    a(f'v_cmp_eq_u32 vcc, 3, v5'); a(f'v_cndmask_b32 v{SQ}, v{SQ}, v{SQ+3}, vcc')
    a(f'v_mov_b32 v{SQ+1}, v{SQ}')
    for r in (SUM, SQ, CS):
        a(f'v_permlane32_swap_b32 v{r}, v{r+1}')
    for r in (SUM, SQ, CS):
        a(f'v_add_f32 v{r}, v{r}, v{r+1}')
    a(f'v_mul_f32 v{SUM}, {fl(1/640)}, v{SUM}')
    a(f'v_mul_f32 v{SQ}, {fl(1/640)}, v{SQ}')
    a(f'v_fma_f32 v{SQ}, -v{SUM}, v{SUM}, v{SQ}')
    a(f'v_max_f32 v{SQ}, 0, v{SQ}')
    a(f'v_add_f32 v{SQ}, {fl(1e-5)}, v{SQ}')
    a(f'v_rsq_f32 v{SQ}, v{SQ}')
    a('s_lshl_b32 s28, s20, 7'); a(f's_add_u32 s28, s28, {TM}'); a('v_lshl_add_u32 v5, v4, 2, s28')
    if vpath: a('v_mov_b32 v6, v2')
    else: swap23(a, 6, 2, 32)
    a('s_lshl_b32 s28, s22, 7'); a(f's_add_u32 s28, s28, {CSL}'); a('v_lshl_add_u32 v6, v6, 2, s28')
    a(f'ds_write_b32 v5, v{SUM}'); a(f'ds_write_b32 v5, v{SQ} offset:512'); a(f'ds_write_b32 v6, v{CS}')
    if not vpath:
        Lnm = a.new_label('p1_nomean')
        a('s_cmp_lg_u32 s5, 0'); a(f's_cbranch_scc1 {Lnm}')
        a('s_lshl_b32 s28, s4, 2'); a('s_add_u32 s28, s28, s20'); a('s_lshl_b32 s28, s28, 7'); a(f's_add_u32 s28, s28, {MEANX}')
        a('v_lshlrev_b32 v7, 2, v2')
        a(f'buffer_store_dword v{SUM}, v7, s[8:11], s28 offen')
        a.label(Lnm)
    a('s_waitcnt lgkmcnt(0)')
    a('s_barrier')
    P = 32
    if not vpath:
        for t in range(2):
            a(f's_lshl_b32 s28, s{20+t}, 7'); a(f's_add_u32 s28, s28, {TM}'); a('v_lshl_add_u32 v5, v2, 2, s28')
            a(f'ds_read_b32 v{128+4*t}, v5'); a(f'ds_read_b32 v{130+4*t}, v5 offset:512')
        for u in range(2):
            a(f's_lshl_b32 s28, s{22+u}, 7'); a(f's_add_u32 s28, s28, {CSL}'); a('v_lshl_add_u32 v5, v3, 5, s28')
            for k in range(4):
                a(f'ds_read_b128 {vr(P+16*u+4*k,4)}, v5 offset:{(k>>1)*64 + (k&1)*16}')
        a('s_cmp_lt_u32 s5, 5'); a(f's_cselect_b32 s28, {fl(QSCALE)}, 1.0')
        a('s_waitcnt lgkmcnt(0)')
        for t in range(2):
            a(f'v_mul_f32 v{128+4*t}, -1.0, v{128+4*t}'); a(f'v_mul_f32 v{130+4*t}, s28, v{130+4*t}')
        for u in range(2):
            for t in range(2):
                A = ACC(u,t)
                for k in range(8):
                    a(f'v_pk_fma_f32 {vr(A+2*k,2)}, {vr(P+16*u+2*k,2)}, {vr(128+4*t,2)}, {vr(A+2*k,2)} op_sel_hi:[1,0,1]')
                for k in range(8):
                    a(f'v_pk_mul_f32 {vr(A+2*k,2)}, {vr(A+2*k,2)}, {vr(130+4*t,2)} op_sel_hi:[1,0]')
                for k in range(8):
                    a(f'v_cvt_pk_bf16_f32 v{A+k}, v{A+2*k}, v{A+2*k+1}')
                for q in range(2):
                    a(f'buffer_store_dwordx4 {vr(A+4*q,4)}, v{SA+2*u+q}, s[8:11], s{32+t} offen')
    else:
        for u in range(2):
            a(f's_lshl_b32 s28, s{22+u}, 7'); a(f's_add_u32 s28, s28, {CSL}'); a('v_lshl_add_u32 v5, v2, 2, s28')
            a(f'ds_read_b32 v{128+2*u}, v5')
        for t in range(2):
            a(f's_lshl_b32 s28, s{20+t}, 7'); a(f's_add_u32 s28, s28, {TM}'); a('v_lshl_add_u32 v5, v3, 5, s28')
            for k in range(4):
                a(f'ds_read_b128 {vr(P+4*k,4)}, v5 offset:{(k>>1)*64 + (k&1)*16}')
                a(f'ds_read_b128 {vr(P+16+4*k,4)}, v5 offset:{512 + (k>>1)*64 + (k&1)*16}')
            a('s_waitcnt lgkmcnt(0)')
            if t == 0:
                for u in range(2): a(f'v_mul_f32 v{128+2*u}, -1.0, v{128+2*u}')
            for u in range(2):
                A = ACC(u,t)
                for k in range(8):
                    a(f'v_pk_fma_f32 {vr(A+2*k,2)}, {vr(P+2*k,2)}, {vr(128+2*u,2)}, {vr(A+2*k,2)} op_sel_hi:[1,0,1]')
                for k in range(8):
                    a(f'v_pk_mul_f32 {vr(A+2*k,2)}, {vr(A+2*k,2)}, {vr(P+16+2*k,2)}')
                for k in range(8):
                    a(f'v_cvt_pk_bf16_f32 v{A+k}, v{A+2*k}, v{A+2*k+1}')
                for q in range(2):
                    a(f'buffer_store_dwordx4 {vr(A+4*q,4)}, v{SA+u}, s[8:11], s{32+t} offen offset:{768*q}')
    a('s_endpgm')
```

```python
from common import *

def prep2_decode(a, it, V):
    pass

def gen_prep2(a, V, T, ldsbase_s, it, Lskip):
    if it > 0: a('s_cmp_ge_u32 s31, 2880'); a(f's_cbranch_scc1 {Lskip}')
    Ld, Lj = a.new_label('pr_d'), a.new_label('pr_j')
    a('s_cmp_ge_u32 s31, 1920'); a(f's_cbranch_scc1 {Ld}')
    a('s_cmp_ge_u32 s31, 960')
    a('s_cselect_b32 s24, s16, s12'); a('s_cselect_b32 s25, s17, s13')
    a('s_cselect_b32 s32, 960, 0'); a('s_cselect_b32 s39, 128, 0')
    a('s_sub_u32 s32, s31, s32')
    a('s_mul_i32 s33, s32, 2731'); a('s_lshr_b32 s33, s33, 16')
    a('s_mul_i32 s34, s33, 24'); a('s_sub_u32 s34, s32, s34')
    a(f'v_mul_u32_u24 v{T}, 3072, v{V}'); a(f'v_add_u32 v{T}, v{T}, v{V+1}')
    a(f's_mul_i32 s36, s33, {16*3072}'); a('s_lshl_b32 s37, s34, 7'); a('s_add_u32 s36, s36, s37')
    a(f's_add_u32 s37, s36, {8*3072}')
    for z in range(2):
        a('s_lshl_b32 s38, s34, 2'); a(f's_add_u32 s38, s38, {2*z}')
        a(f'v_add_u32 v{T+1}, s38, v{V+4}')
        a(f'v_mul_u32_u24 v{T+2}, 171, v{T+1}'); a(f'v_lshrrev_b32 v{T+2}, 10, v{T+2}')
        a(f'v_mul_u32_u24 v{T+3}, 6, v{T+2}'); a(f'v_sub_u32 v{T+3}, v{T+1}, v{T+3}')
        a(f'v_mul_u32_u24 v{T+2}, 40, v{T+2}'); a(f'v_add_u32 v{T+2}, s33, v{T+2}')
        a(f'v_mul_u32_u24 v{T+2}, 6144, v{T+2}')
        a(f'v_lshl_add_u32 v{T+2}, v{T+3}, 10, v{T+2}')
        a(f'v_add_u32 v{T+2}, s39, v{T+2}')
        a(f'v_add_u32 v{V+8+2*it+z}, v{T+2}, v{V+6}')
        a(f'v_add_u32 v{V+8+2*it+z}, {WGF}, v{V+8+2*it+z}')
    a(f's_branch {Lj}')
    a.label(Ld)
    a('s_mov_b32 s24, s20'); a('s_mov_b32 s25, s21')
    a('s_sub_u32 s32, s31, 1920')
    a('s_mul_i32 s33, s32, 6554'); a('s_lshr_b32 s33, s33, 16')
    a('s_mul_i32 s34, s33, 10'); a('s_sub_u32 s34, s32, s34')
    a(f'v_mul_u32_u24 v{T}, 1280, v{V}'); a(f'v_add_u32 v{T}, v{T}, v{V+1}')
    a(f's_mul_i32 s36, s33, {16*1280}'); a('s_lshl_b32 s37, s34, 7'); a('s_add_u32 s36, s36, s37')
    a(f's_add_u32 s37, s36, {8*1280}')
    for z in range(2):
        a('s_lshl_b32 s38, s34, 2'); a(f's_add_u32 s38, s38, {2*z}')
        a(f'v_add_u32 v{T+1}, s38, v{V+4}')
        a(f'v_mul_u32_u24 v{T+2}, 205, v{T+1}'); a(f'v_lshrrev_b32 v{T+2}, 10, v{T+2}')
        a(f'v_mul_u32_u24 v{T+3}, 5, v{T+2}'); a(f'v_sub_u32 v{T+3}, v{T+1}, v{T+3}')
        a(f'v_mul_u32_u24 v{T+2}, 96, v{T+2}'); a(f'v_add_u32 v{T+2}, s33, v{T+2}')
        a(f'v_mul_u32_u24 v{T+2}, 2560, v{T+2}')
        a(f'v_lshrrev_b32 v{T+1}, 1, v{T+3}'); a(f'v_lshl_add_u32 v{T+2}, v{T+1}, 10, v{T+2}')
        a(f'v_and_b32 v{T+1}, 1, v{T+3}'); a(f'v_lshl_add_u32 v{T+2}, v{T+1}, 8, v{T+2}')
        a(f'v_lshrrev_b32 v{T+1}, 2, v{T+3}'); a(f'v_sub_u32 v{T+1}, 9, v{T+1}')
        a(f'v_lshlrev_b32 v{T+1}, v{T+1}, v{V+3}'); a(f'v_add_u32 v{T+2}, v{T+2}, v{T+1}')
        a(f'v_add_u32 v{V+8+2*it+z}, v{T+2}, v{V+7}')
        a(f'v_add_u32 v{V+8+2*it+z}, {WDF}, v{V+8+2*it+z}')
    a.label(Lj)
    a(f's_add_u32 m0, s{ldsbase_s}, {it*2048}')
    a(f'buffer_load_dwordx4 v{T}, s[24:27], s36 offen lds')
    a(f's_add_u32 m0, s{ldsbase_s}, {it*2048+1024}')
    a(f'buffer_load_dwordx4 v{T}, s[24:27], s37 offen lds')

def prep2_consts(a, V, T):
    prep_lane_consts(a, V, T)
    a(f'v_bfe_u32 v{T}, v0, 2, 1'); a(f'v_lshlrev_b32 v{V+6}, 4, v{T}')
    a(f'v_bfe_u32 v{T}, v0, 3, 1'); a(f'v_lshl_add_u32 v{V+6}, v{T}, 2, v{V+6}')
    a(f'v_and_b32 v{T}, 3, v0'); a(f'v_add_u32 v{V+6}, v{V+6}, v{T}')
    a(f'v_lshl_add_u32 v{V+6}, v{V+3}, 5, v{V+6}'); a(f'v_lshlrev_b32 v{V+6}, 4, v{V+6}')
    swap23(a, V+7, V+5, T)
    a(f'v_lshlrev_b32 v{V+7}, 4, v{V+7}')

def prep2_finish(a, V, T, ldsbase_s, it):
    a(f'v_add_u32 v{T+8}, s{ldsbase_s}, v{V+2}')
    a(f'v_xor_b32 v{T+9}, 64, v{T+8}')
    a(f'ds_read_b64_tr_b16 {vr(T,2)}, v{T+8} offset:{it*2048}')
    a(f'ds_read_b64_tr_b16 {vr(T+2,2)}, v{T+8} offset:{it*2048+512}')
    a(f'ds_read_b64_tr_b16 {vr(T+4,2)}, v{T+9} offset:{it*2048}')
    a(f'ds_read_b64_tr_b16 {vr(T+6,2)}, v{T+9} offset:{it*2048+512}')
    a('s_waitcnt lgkmcnt(0)')
    a(f'buffer_store_dwordx4 {vr(T,4)}, v{V+8+2*it}, s[8:11], 0 offen')
    a(f'buffer_store_dwordx4 {vr(T+4,4)}, v{V+8+2*it+1}, s[8:11], 0 offen')

def gen_p2(NB=4, force_fallback=False):
    a = Asm()
    Lend = 'p2_end'
    prologue(a, [('ws', 8), ('wg', 12), ('wu', 16), ('wd', 20)], Lend)
    a(f's_mov_b32 s26, {SZ["wg"]}'); a('s_mov_b32 s27, 0x20000')
    a('s_mov_b32 s24, s12'); a('s_mov_b32 s25, s13')
    O = lambda q: 0 + 64 + 16*q
    Sb = lambda q: 128 + 16*q
    Q1 = lambda q: 40 + 4*q
    Q2 = lambda q: 56 + 2*q
    KV = lambda b: 192 + 14*b
    K1 = lambda b: KV(b); K2 = lambda b: KV(b) + 4; VV = lambda b, s: KV(b) + 6 + 4*s
    IDX, vK1, vK2, vV, vMSK = 2, 3, 4, 5, 6
    EXB = 0
    PRB = 98304
    a('s_and_b32 s4, s2, 7'); a('s_lshl_b32 s4, s4, 1'); a('s_lshr_b32 s5, s2, 7'); a('s_add_u32 s4, s4, s5')
    a('s_bfe_u32 s5, s2, 0x40003')
    a('s_lshr_b32 s6, s3, 2'); a('s_and_b32 s7, s3, 3')
    a('v_and_b32 v8, 31, v0'); a('v_lshrrev_b32 v9, 5, v0')
    a('s_lshl_b32 s28, s6, 10'); a(f'v_lshl_add_u32 v{vK1}, v0, 4, s28')
    a('s_lshl_b32 s28, s6, 3'); a('s_add_u32 s28, s28, 2048')
    a(f'v_lshl_add_u32 v{vK2}, v8, 4, s28'); a(f'v_lshl_add_u32 v{vK2}, v9, 2, v{vK2}')
    swap23(a, 10, 8, 11)
    a('v_min_u32 v11, 20, v8'); a('v_cmp_gt_u32 vcc, 16, v8'); a('v_cndmask_b32 v10, v11, v10, vcc')
    a('v_mul_u32_u24 v11, 384, v9'); a(f'v_lshl_add_u32 v{vV}, v10, 4, v11')
    a(f's_mul_i32 s50, s4, {64*2560}'); a(f's_add_u32 s53, s50, {QF}'); a(f's_add_u32 s50, s50, {KF}')
    a(f's_mul_i32 s51, s7, {16*2560}'); a('s_add_u32 s51, s51, s50')
    a('s_lshl_b32 s54, s4, 1'); a('s_add_u32 s54, s54, s6'); a(f's_mul_i32 s54, s54, {64*1536}'); a(f's_add_u32 s54, s54, {VF}')
    a(f's_mul_i32 s52, s7, {16*1536}'); a('s_add_u32 s52, s52, s54')
    a(f's_mul_i32 s28, s5, {4*2560}'); a('s_add_u32 s53, s53, s28')
    KT1, KT2 = Sb(3), Sb(3) + 4
    a(f'buffer_load_dwordx4 {vr(KT1,4)}, v{vK1}, s[8:11], s50 offen')
    a(f'buffer_load_dword v{KT2}, v{vK2}, s[8:11], s50 offen')
    for q in range(4):
        a(f's_add_u32 s28, s53, {q*2560}')
        a(f'buffer_load_dwordx4 {vr(Q1(q),4)}, v{vK1}, s[8:11], s28 offen')
        a(f'buffer_load_dword v{Q2(q)}, v{vK2}, s[8:11], s28 offen')
    def loadK(j):
        b = j % NB
        return [f's_add_u32 s28, s51, {j*2560}',
                f'buffer_load_dwordx4 {vr(K1(b),4)}, v{vK1}, s[8:11], s28 offen',
                f'buffer_load_dword v{K2(b)}, v{vK2}, s[8:11], s28 offen']
    def loadV(j):
        b = j % NB
        return [f's_add_u32 s29, s52, {j*1536}',
                f'buffer_load_dwordx4 {vr(VV(b,0),4)}, v{vV}, s[8:11], s29 offen',
                f'buffer_load_dwordx4 {vr(VV(b,1),4)}, v{vV}, s[8:11], s29 offen offset:768']
    vm = []
    vm += ['kt', 'kt'] + ['q'] * 8
    for j in range(NB):
        for l in loadK(j) + loadV(j): a(l)
        vm += [('K', j)] * 2 + [('V', j)] * 2
    def wait_for(tag):
        last = max(i for i, t in enumerate(vm) if t == tag)
        n = len(vm) - 1 - last
        a(f's_waitcnt vmcnt({n})')
    a(f'v_mov_b32 v{IDX}, 0xdddddddd')
    a(f'v_sub_u32 v{vMSK}, 1, v9'); a(f'v_mul_u32_u24 v10, 0x3f80, v{vMSK}'); a(f'v_mul_u32_u24 v{vMSK}, 0xffff, v{vMSK}')
    for b in range(NB): a(f'v_mov_b32 v{K2(b)+1}, v10')
    a(f'v_mov_b32 v{KT2+1}, v10')
    for q in range(4): a(f'v_mov_b32 v{Q2(q)+1}, 0')
    for r in range(64, 128): a(f'v_mov_b32 v{r}, 0')
    PV_, PT = 16, 28
    prep2_consts(a, PV_, PT)
    a('s_lshl_b32 s30, s3, 12'); a(f's_add_u32 s30, s30, {PRB}')
    a('s_lshl_b32 s55, s2, 3'); a('s_add_u32 s55, s55, s3')
    wait_for('q')
    for q in range(3):
        a(f'v_mfma_f32_32x32x16_bf16 {vr(Sb(q),16)}, {vr(KT1,4)}, {vr(Q1(q),4)}, 0')
        a(f'v_mfma_f32_32x32x8_bf16 {vr(Sb(q),16)}, {vr(KT2,2)}, {vr(Q2(q),2)}, {vr(Sb(q),16)}')
    a(f'v_mfma_f32_32x32x16_bf16 {vr(O(3),16)}, {vr(KT1,4)}, {vr(Q1(3),4)}, 0')
    a(f'v_mfma_f32_32x32x8_bf16 {vr(O(3),16)}, {vr(KT2,2)}, {vr(Q2(3),2)}, {vr(O(3),16)}')
    for q in range(4):
        s = Sb(q) if q < 3 else O(3)
        a(f'v_max3_f32 v{s}, v{s}, v{s+1}, v{s+2}')
        for k in range(6): a(f'v_max3_f32 v{s}, v{s}, v{s+3+2*k}, v{s+4+2*k}')
        a(f'v_max_f32 v{s}, v{s}, v{s+15}')
        a(f'v_mov_b32 v{s+1}, v{s}')
    for q in range(4):
        s = Sb(q) if q < 3 else O(3)
        a(f'v_permlane32_swap_b32 v{s}, v{s+1}')
    for q in range(4):
        s = Sb(q) if q < 3 else O(3)
        a(f'v_max_f32 v{s}, v{s}, v{s+1}')
        a(f'v_cvt_pk_bf16_f32 v{s}, -v{s}, 0')
        a(f'v_and_b32 v{Q2(q)+1}, v{vMSK}, v{s}')
    for r in range(O(3), O(3)+16): a(f'v_mov_b32 v{r}, 0')
    def qk1(j, q): return f'v_mfma_f32_32x32x16_bf16 {vr(Sb(q),16)}, {vr(K1(j%NB),4)}, {vr(Q1(q),4)}, 0'
    def qk2(j, q): return f'v_mfma_f32_32x32x8_bf16 {vr(Sb(q),16)}, {vr(K2(j%NB),2)}, {vr(Q2(q),2)}, {vr(Sb(q),16)}'
    def pv(j, q, s): return f'v_smfmac_f32_32x32x32_bf16 {vr(O(q),16)}, {vr(VV(j%NB,s),4)}, {vr(Sb(q)+8*s,8)}, v{IDX}'
    wait_for(('K', 0))
    a(qk1(0, 0)); a(qk2(0, 0))
    NT = 16
    a('s_lshl_b32 s28, s6, 4'); a('s_add_u32 s28, s28, s7'); a('s_mul_i32 s28, s28, 3072'); a(f's_add_u32 s28, s28, {EXB}')
    a('v_lshl_add_u32 v7, v0, 4, s28')
    def exw(q): return [f'ds_write_b128 v7, {vr(O(q)+4*k,4)} offset:{q*4*3072 + k*1024}' for k in range(3)]
    for j in range(NT):
        for q in range(4):
            nj, nq = (j, q+1) if q < 3 else (j+1, 0)
            pj, pq = (j, q-1) if q > 0 else (j-1, 3)
            has_next = nj < NT; has_prev = pj >= 0
            e = [f'v_exp_f32 v{Sb(q)+k}, v{Sb(q)+k}' for k in range(16)]
            if q == 3 and has_next: wait_for(('K', nj))
            if has_next: a(qk1(nj, nq))
            for l in e[0:4]: a(l)
            if has_next: a(qk2(nj, nq))
            if q == 3 and j + NB < NT:
                for l in loadK(j + NB): a(l)
                vm += [('K', j+NB)] * 2
            if q == 1 and j >= 1 and j - 1 + NB < NT:
                for l in loadV(j - 1 + NB): a(l)
                vm += [('V', j-1+NB)] * 2
            if j == 1 and q == 2:
                for it in range(2):
                    Ls = a.new_label('pr_skip')
                    a(f's_add_u32 s31, s55, {2048*it}')
                    if it == 0:
                        gen_prep2(a, PV_, PT, 30, it, Ls); vm += ['p', 'p']; a.label(Ls)
            if j == 5 and q == 2:
                pass
            for l in e[4:8]: a(l)
            if has_prev: a(pv(pj, pq, 1))
            for l in e[8:12]: a(l)
            if q == 0: wait_for(('V', j))
            a(pv(j, q, 0))
            if j == NT-1 and q >= 2:
                for l in exw(q-2): a(l)
            for l in e[12:16]: a(l)
    a(pv(NT-1, 3, 1))
    for l in exw(2): a(l)
    prep2_finish(a, PV_, PT, 30, 0)
    Ls2 = a.new_label('pr_skip')
    a(f's_add_u32 s31, s55, 2048')
    gen_prep2(a, PV_, PT, 30, 1, Ls2)
    a('s_waitcnt vmcnt(0)')
    prep2_finish(a, PV_, PT, 30, 1)
    a.label(Ls2)
    for l in exw(3): a(l)
    a('s_waitcnt lgkmcnt(0)')
    a('s_barrier')
    a('s_lshl_b32 s28, s6, 2'); a('s_add_u32 s28, s28, s7'); a(f's_mul_i32 s28, s28, {4*3072}'); a(f's_add_u32 s28, s28, {EXB}')
    a('v_lshl_add_u32 v7, v0, 4, s28')
    R0 = 64
    for src in range(4):
        for k in range(3):
            a(f'ds_read_b128 {vr(R0+12*src+4*k,4)}, v7 offset:{src*3072 + k*1024}')
    a('s_lshl_b32 s28, s5, 2'); a('s_add_u32 s28, s28, s7'); a('s_mul_i32 s28, s28, 40')
    a('s_lshl_b32 s29, s4, 1'); a('s_add_u32 s29, s29, s6'); a('s_add_u32 s29, s29, s28'); a('s_lshl_b32 s29, s29, 10')
    a(f's_add_u32 s56, s29, {OF}')
    a('s_lshr_b32 s29, s4, 1'); a('s_add_u32 s29, s29, s28'); a('s_add_u32 s29, s29, 32'); a('s_lshl_b32 s29, s29, 10')
    a('s_and_b32 s28, s4, 1'); a('s_lshl_b32 s28, s28, 9'); a('s_add_u32 s29, s29, s28')
    a('s_lshl_b32 s28, s6, 3'); a('s_add_u32 s29, s29, s28'); a(f's_add_u32 s57, s29, {OF}')
    a('v_lshlrev_b32 v10, 4, v0')
    a('v_lshlrev_b32 v11, 4, v8'); a('v_lshl_or_b32 v11, v9, 31, v11')
    a('s_waitcnt lgkmcnt(0)')
    for k in range(12):
        a(f'v_add_f32 v{R0+k}, v{R0+k}, v{R0+12+k}'); a(f'v_add_f32 v{R0+24+k}, v{R0+24+k}, v{R0+36+k}')
    for k in range(12): a(f'v_add_f32 v{R0+k}, v{R0+k}, v{R0+24+k}')
    Lfb, Lfin = 'p2_fallback', 'p2_fin'
    a(f'v_mov_b32 v12, v{R0+8}'); a(f'v_mov_b32 v13, v{R0+8}')
    a('v_permlane32_swap_b32 v12, v13')
    for k in range(12): a(f'v_fma_f32 v13, v{R0+k}, 0, v13')
    if force_fallback: a('v_cmp_o_f32 vcc, v13, v13')
    else: a(f'v_cmp_nle_f32 vcc, {fl(2.0**-40)}, v13')
    a('s_nop 4')
    a(f's_cbranch_vccnz {Lfb}')
    a.label(Lfin)
    a(f'v_mov_b32 v12, v{R0+8}'); a(f'v_mov_b32 v13, v{R0+8}')
    a('v_permlane32_swap_b32 v12, v13')
    a('v_rcp_f32 v13, v13')
    for k in range(12): a(f'v_mul_f32 v{R0+k}, v{R0+k}, v13')
    for k in range(6): a(f'v_cvt_pk_bf16_f32 v{R0+k}, v{R0+2*k}, v{R0+2*k+1}')
    a(f'buffer_store_dwordx4 {vr(R0,4)}, v10, s[8:11], s56 offen')
    a(f'buffer_store_dwordx2 {vr(R0+4,2)}, v11, s[8:11], s57 offen')
    a.label(Lend)
    a('s_endpgm')
    a.label(Lfb)
    FQ1, FQ2, FK1, FK2, FV, FS, FO, M = 40, 44, 48, 52, 56, 128, 64, 14
    a('s_mul_i32 s28, s7, 2560'); a('s_add_u32 s28, s28, s53')
    a(f'buffer_load_dwordx4 {vr(FQ1,4)}, v{vK1}, s[8:11], s28 offen')
    a(f'buffer_load_dword v{FQ2}, v{vK2}, s[8:11], s28 offen')
    a(f'v_mov_b32 v{FQ2+1}, 0'); a(f'v_mov_b32 v{FK2+1}, 0')
    for r in range(FO, FO+16): a(f'v_mov_b32 v{r}, 0')
    a(f'v_mov_b32 v{M}, 0xff800000')
    a('s_mov_b32 s28, s50'); a('s_mov_b32 s29, s54'); a('s_mov_b32 s31, 64')
    a.label('p2_fb_loop')
    a(f'buffer_load_dwordx4 {vr(FK1,4)}, v{vK1}, s[8:11], s28 offen')
    a(f'buffer_load_dword v{FK2}, v{vK2}, s[8:11], s28 offen')
    a(f'buffer_load_dwordx4 {vr(FV,4)}, v{vV}, s[8:11], s29 offen')
    a(f'buffer_load_dwordx4 {vr(FV+4,4)}, v{vV}, s[8:11], s29 offen offset:768')
    a('s_waitcnt vmcnt(0)')
    a(f'v_mfma_f32_32x32x16_bf16 {vr(FS,16)}, {vr(FK1,4)}, {vr(FQ1,4)}, 0')
    a(f'v_mfma_f32_32x32x8_bf16 {vr(FS,16)}, {vr(FK2,2)}, {vr(FQ2,2)}, {vr(FS,16)}')
    a(f'v_max3_f32 v12, v{FS}, v{FS+1}, v{M}')
    for k in range(7): a(f'v_max3_f32 v12, v12, v{FS+2+2*k}, v{FS+3+2*k}')
    a('v_mov_b32 v13, v12')
    a('v_permlane32_swap_b32 v12, v13')
    a('v_max_f32 v12, v12, v13')
    a(f'v_sub_f32 v13, v{M}, v12')
    a('v_exp_f32 v13, v13')
    a(f'v_mov_b32 v{M}, v12')
    for k in range(16): a(f'v_sub_f32 v{FS+k}, v{FS+k}, v12')
    for k in range(16): a(f'v_exp_f32 v{FS+k}, v{FS+k}')
    for k in range(16): a(f'v_mul_f32 v{FO+k}, v{FO+k}, v13')
    a(f'v_smfmac_f32_32x32x32_bf16 {vr(FO,16)}, {vr(FV,4)}, {vr(FS,8)}, v{IDX}')
    a(f'v_smfmac_f32_32x32x32_bf16 {vr(FO,16)}, {vr(FV+4,4)}, {vr(FS+8,8)}, v{IDX}')
    a('s_add_u32 s28, s28, 2560'); a('s_add_u32 s29, s29, 1536')
    a('s_sub_u32 s31, s31, 1'); a('s_cmp_lg_u32 s31, 0')
    a('s_nop 7')
    a('s_cbranch_scc1 p2_fb_loop')
    a('s_nop 7')
    a(f's_branch {Lfin}')
    return a.lines, 192 + 14*NB, 98304 + 32768
```

```python
from common import *

def gen_p35(which, R=6):
    a = Asm()
    p3 = which == 3
    n = f'p{which}'
    KS = 40 if p3 else 96
    S = KS // 4
    BSRC = OF if p3 else GF
    ASRC = WOF if p3 else WDF
    SLOT = 18432
    XT = R * SLOT
    WB = XT + 10240
    LDS = WB + 2048 if p3 else R * SLOT
    Lend, Lload = n + '_end', n + '_load'
    prologue(a, [('ws', 8), ('x' if p3 else 'out', 12)], Lend)
    a('s_and_b32 s6, s2, 3'); a('s_lshl_b32 s6, s6, 3'); a('s_bfe_u32 s4, s2, 0x30003'); a('s_add_u32 s4, s4, s6')
    a('s_bfe_u32 s6, s2, 0x10002'); a('s_lshl_b32 s6, s6, 2'); a('s_lshr_b32 s5, s2, 6'); a('s_add_u32 s5, s5, s6')
    a('s_cmp_ge_u32 s3, 4'); a(f's_cbranch_scc1 {Lload}')
    a('s_and_b32 s6, s3, 1'); a('s_lshr_b32 s7, s3, 1')
    NSET = (R * SLOT + 65535) // 65536
    BA = lambda st: 8 + st; AA = lambda st: 12 + st; A2 = lambda st: 16 + st
    ACC = lambda u: 64 + 16*u
    BF = lambda p: 112 + 16*p; AF = lambda p, u: 116 + 16*p + 4*u
    a('v_and_b32 v2, 31, v0'); a('v_lshrrev_b32 v3, 5, v0')
    a('s_lshl_b32 s28, s6, 12'); a('s_lshl_b32 s29, s7, 11'); a('s_add_u32 s28, s28, s29')
    a(f'v_lshl_add_u32 v{BA(0)}, v0, 4, s28')
    a('s_mul_i32 s28, s7, 5120'); a('s_add_u32 s29, s28, 8192')
    a(f'v_lshl_add_u32 v{AA(0)}, v0, 4, s29')
    a('v_and_b32 v4, 15, v0'); a('v_lshl_add_u32 v4, v3, 4, v4')
    if p3:
        a('v_bfe_u32 v5, v0, 4, 1'); a('v_sub_u32 v20, 1, v5')
        a('v_lshl_add_u32 v4, v4, 4, s28'); a('v_mul_lo_u32 v4, v4, v20')
        a('s_lshl_b32 s28, s7, 6'); a(f's_add_u32 s28, s28, {WB}')
        a('v_lshl_add_u32 v6, v3, 4, s28'); a('v_mul_lo_u32 v6, v6, v5')
        a('v_add_u32 v21, v4, v6')
    else:
        a(f's_add_u32 s29, s29, 2048'); a(f'v_lshl_add_u32 v{A2(0)}, v4, 4, s29')
    for st in range(1, NSET):
        a(f'v_add_u32 v{BA(st)}, {0x10000*st}, v{BA(0)}'); a(f'v_add_u32 v{AA(st)}, {0x10000*st}, v{AA(0)}')
        if not p3: a(f'v_add_u32 v{A2(st)}, {0x10000*st}, v{A2(0)}')
    a('s_lshl_b32 s20, s4, 1'); a('s_add_u32 s20, s20, s6')
    a('v_lshlrev_b32 v22, 4, v0'); a('v_lshlrev_b32 v23, 2, v2')
    RES = 32
    a('s_lshl_b32 s28, s20, 7'); a(f's_add_u32 s28, s28, {MEANX if p3 else MEANH}')
    a(f'buffer_load_dword v24, v23, s[8:11], s28 offen')
    a('s_mul_i32 s21, s20, 40'); a('s_mul_i32 s28, s5, 5'); a('s_add_u32 s21, s21, s28')
    a('s_mul_i32 s28, s7, 3'); a('s_add_u32 s21, s21, s28'); a('s_lshl_b32 s21, s21, 10'); a(f's_add_u32 s21, s21, {HF}')
    if not p3:
        for k in range(3):
            a(f'buffer_load_dwordx4 {vr(RES+4*k,4)}, v22, s[8:11], s21 offen offset:{1024*k}')
    for r in range(64, 112): a(f'v_mov_b32 v{r}, 0')
    def reads(g):
        st, i = g >> 1, g & 1; p = g & 1
        slot = (st % R) * SLOT; hi = slot >> 16; off = slot & 0xffff
        if off + 8192 + 10240 > 65535 + 0:
            hi_a = (slot + 18431) >> 16
        rd = []
        def ad(base, o):
            tot = slot + o
            h_ = tot >> 16
            return f'v{base(h_)} offset:{tot & 0xffff}'
        rd.append(f'ds_read_b128 {vr(BF(p),4)}, {ad(BA, i*1024)}')
        rd.append(f'ds_read_b128 {vr(AF(p,0),4)}, {ad(AA, i*2560)}')
        rd.append(f'ds_read_b128 {vr(AF(p,1),4)}, {ad(AA, i*2560 + 1024)}')
        if p3:
            kk = (st*4 + i) * 32
            rd.append(f's_mov_b32 s28, {slot + 8192 + 2048 + i*2560 - kk}')
            rd.append(f'v_mad_u32_u24 v{25+p}, v20, s28, v21')
            rd.append(f'ds_read_b128 {vr(AF(p,2),4)}, v{25+p} offset:{kk}')
        else:
            rd.append(f'ds_read_b128 {vr(AF(p,2),4)}, {ad(A2, i*2560)}')
        return rd
    def mm(u, p): return f'v_mfma_f32_32x32x16_bf16 {vr(ACC(u),16)}, {vr(AF(p,u),4)}, {vr(BF(p),4)}, {vr(ACC(u),16)}'
    a('s_barrier')
    for l in reads(0): a(l)
    NG = 2*S
    for g in range(NG):
        p = g & 1
        rd = reads(g+1) if g + 1 < NG else []
        a('s_waitcnt lgkmcnt(0)')
        a(mm(0, p))
        if (g & 1) == 1 and g + 1 < NG: a('s_barrier')
        for l in rd: a(l)
        a(mm(1, p)); a(mm(2, p))
    last = (S - 1) % R
    EX = (last + 1) * SLOT if last + 3 <= R else 0
    assert EX + 28672 <= R * SLOT and (EX > last * SLOT or 28672 <= last * SLOT)
    U = [64, 72, 80, 88, 96]
    Lk1, Lj = a.new_label(n + '_k1'), a.new_label(n + '_j')
    a('s_mul_i32 s28, s6, 14336'); a(f's_add_u32 s28, s28, {EX}')
    a('v_lshl_add_u32 v4, v0, 4, s28')
    a('s_nop 7'); a('s_cmp_eq_u32 s7, 1'); a(f's_cbranch_scc1 {Lk1}')
    def fin(first, cnt, wr_units, wr_off, rd_off):
        k = 0
        for u in wr_units:
            a(f'ds_write_b128 v4, {vr(U[u],4)} offset:{wr_off + k*1024}'); k += 1
            a(f'ds_write_b128 v4, {vr(U[u]+4,4)} offset:{wr_off + k*1024}'); k += 1
        if p3: a(f'ds_write_b128 v4, {vr(104,4)} offset:{wr_off + 6*1024}')
        a('s_waitcnt lgkmcnt(0)')
        a('s_barrier')
        T = 112
        for k in range(2*cnt): a(f'ds_read_b128 {vr(T+4*k,4)}, v4 offset:{rd_off + k*1024}')
        if p3:
            a(f'ds_read_b128 {vr(T+24,4)}, v4 offset:{rd_off + 6*1024}')
            a('s_lshl_b32 s28, s6, 5'); a('v_add_u32 v5, s28, v2'); a('v_mul_u32_u24 v5, 160, v5')
            a('v_lshl_add_u32 v5, v3, 4, v5'); a(f'v_add_u32 v5, {XT}, v5')
            for k in range(cnt): a(f'ds_read_b128 {vr(RES+4*k,4)}, v5 offset:{(first+k)*32}')
        a('s_waitcnt vmcnt(0) lgkmcnt(0)')
        if p3:
            a(f'v_add_f32 v104, v104, v{T+24}'); a('v_add_f32 v24, v24, v104')
            a('v_mul_f32 v26, -1.0, v24')
        else:
            a('v_mov_b32 v26, v24')
        a('v_mov_b32 v28, 0'); a('v_mov_b32 v29, 0')
        for k in range(cnt):
            u = U[first + k]
            for j in range(4):
                a(f'v_pk_add_f32 {vr(u+2*j,2)}, {vr(u+2*j,2)}, {vr(T+8*k+2*j,2)}')
            for j in range(4):
                a(f'v_lshlrev_b32 v{T+8*k+2*j}, 16, v{RES+4*k+j}')
                a(f'v_and_b32 v{T+8*k+2*j+1}, 0xffff0000, v{RES+4*k+j}')
            for j in range(4):
                a(f'v_pk_add_f32 {vr(u+2*j,2)}, {vr(u+2*j,2)}, {vr(26,2)} op_sel_hi:[1,0]')
            for j in range(4):
                a(f'v_pk_add_f32 {vr(u+2*j,2)}, {vr(u+2*j,2)}, {vr(T+8*k+2*j,2)}')
            if p3:
                for j in range(4):
                    a(f'v_pk_fma_f32 v[28:29], {vr(u+2*j,2)}, {vr(u+2*j,2)}, v[28:29]')
            for j in range(4):
                a(f'v_cvt_pk_bf16_f32 v{u+j}, v{u+2*j}, v{u+2*j+1}')
            if p3:
                a(f'buffer_store_dwordx4 {vr(u,4)}, v22, s[8:11], s21 offen offset:{1024*k}')
            else:
                a(f'buffer_store_dwordx4 {vr(u,4)}, v6, s[12:15], s22 offen offset:{32*(first+k)}')
        if p3:
            a('v_add_f32 v28, v28, v29'); a('v_mov_b32 v29, v28')
            a('v_permlane32_swap_b32 v28, v29'); a('v_add_f32 v28, v28, v29')
            a('s_lshl_b32 s28, s5, 1'); a('s_add_u32 s28, s28, s7'); a('s_lshl_b32 s28, s28, 13')
            a('s_lshl_b32 s29, s20, 7'); a('s_add_u32 s28, s28, s29'); a(f's_add_u32 s28, s28, {SQP}')
            a('buffer_store_dword v28, v23, s[8:11], s28 offen')
            if first == 0:
                Lm = a.new_label(n + '_nm')
                a('s_cmp_lg_u32 s5, 0'); a(f's_cbranch_scc1 {Lm}')
                a(f's_add_u32 s28, s29, {MEANH}')
                a('buffer_store_dword v24, v23, s[8:11], s28 offen')
                a.label(Lm)
        a('s_endpgm')
    if not p3:
        pass
    for kk, (first, cnt, wr, wo, ro) in enumerate([(0, 3, [3, 4], 0, 7168), (3, 2, [0, 1, 2], 7168, 0)]):
        if kk == 1: a.label(Lk1)
        if not p3:
            a('v_mul_u32_u24 v6, 1280, v2'); a('v_lshl_add_u32 v6, v3, 4, v6')
            a(f's_mul_i32 s22, s20, {32*1280}'); a('s_mul_i32 s28, s5, 160'); a('s_add_u32 s22, s22, s28')
        fin(first, cnt, wr, wo, ro)
    a.label(Lload)
    a('v_lshlrev_b32 v2, 4, v0')
    a(f's_mul_i32 s20, s4, {2*KS*1024}'); a(f's_add_u32 s20, s20, {BSRC}')
    a(f's_add_u32 s21, s20, {KS*1024}')
    a(f's_mul_i32 s22, s5, {KS*2560}'); a(f's_add_u32 s22, s22, {ASRC}')
    Lw = [a.new_label(n + f'_lw{i}') for i in range(4)]
    for i in range(1, 4):
        a(f's_cmp_eq_u32 s3, {4+i}'); a(f's_cbranch_scc1 {Lw[i]}')
    for lw in range(4):
        a.label(Lw[lw])
        extra = 0
        if p3:
            for k in range(3):
                pc = lw + 4*k
                if pc < 10:
                    a(f'v_add_u32 v4, {pc*64}, v0'); a('v_mul_u32_u24 v5, 6554, v4'); a('v_lshrrev_b32 v5, 16, v5')
                    a('v_mul_u32_u24 v6, 10, v5'); a('v_sub_u32 v4, v4, v6'); a('v_mul_u32_u24 v5, 1280, v5')
                    a(f'v_lshl_add_u32 v{8+k}, v4, 4, v5')
            a(f's_mul_i32 s23, s4, {64*1280}'); a('s_mul_i32 s28, s5, 160'); a('s_add_u32 s23, s23, s28')
            if lw >= 2:
                a(f's_mov_b32 s28, {WBAR + (lw-2)*1024}'); a(f's_mov_b32 m0, {WB + (lw-2)*1024}')
                a('buffer_load_dwordx4 v2, s[8:11], s28 offen lds')
        def runs(st):
            slot = (st % R) * SLOT
            if lw < 2:
                r = [(f's{20+lw}', st*4096, slot + lw*4096, 4), ('s22', st*10240 + (8+lw)*1024, slot + 8192 + (8+lw)*1024, 1)]
            else:
                r = [('s22', st*10240 + (lw-2)*4096, slot + 8192 + (lw-2)*4096, 4)]
            return r
        P = 5 if lw < 2 else 4
        def issue(st):
            for (sb, go, lo, cnt) in runs(st):
                a(f's_add_u32 s28, {sb}, {go}'); a(f's_mov_b32 m0, {lo}')
                for k in range(cnt): a(f'buffer_load_dwordx4 v2, s[8:11], s28 offen offset:{1024*k} lds')
        seq = []
        def xissue():
            c = 0
            for k in range(3):
                pc = lw + 4*k
                if pc < 10:
                    a(f's_mov_b32 m0, {XT + pc*1024}')
                    a(f'buffer_load_dwordx4 v{8+k}, s[12:15], s23 offen lds'); c += 1
            return c
        for st in range(min(R, S)):
            issue(st); seq.append((st, P))
        xdone = not p3
        if p3 and R >= S - 1:
            seq.append(('x', xissue())); xdone = True
        for st in range(S):
            idx = [i for i, (t, c) in enumerate(seq) if t == st][0]
            after = sum(c for (t, c) in seq[idx+1:])
            if st == S - 1: after = 0
            assert after <= 63
            a(f's_waitcnt vmcnt({after})')
            a('s_barrier')
            if st >= 1 and st - 1 + R < S:
                issue(st - 1 + R); seq.append((st - 1 + R, P))
                if p3 and not xdone and st - 1 + R == S - 1:
                    seq.append(('x', xissue())); xdone = True
        a('s_endpgm')
    a.label(Lend)
    a('s_endpgm')
    return a.lines, 144, LDS
```

```python
from common import *

def gen_p4(SPS=2, R=7):
    a = Asm()
    KS = 40; S = KS // SPS
    BSZ = 4 * SPS * 1024; ASZ = 6 * SPS * 1024; SLOT = BSZ + ASZ
    RS = R * SLOT
    LDS = RS + 2048
    Lend, Lload = 'p4_end', 'p4_load'
    prologue(a, [('ws', 8)], Lend)
    a('s_and_b32 s6, s2, 1'); a('s_lshl_b32 s6, s6, 3'); a('s_bfe_u32 s4, s2, 0x30003'); a('s_add_u32 s4, s4, s6')
    a('s_bfe_u32 s6, s2, 0x20001'); a('s_lshl_b32 s6, s6, 2'); a('s_lshr_b32 s5, s2, 6'); a('s_add_u32 s5, s5, s6')
    a('s_cmp_ge_u32 s3, 4'); a(f's_cbranch_scc1 {Lload}')
    a('s_and_b32 s6, s3, 1'); a('s_lshr_b32 s7, s3, 1')
    NSET = (R * SLOT + 65535) // 65536
    BA = lambda st: 8 + st; AA = lambda st: 12 + st
    ACC = lambda u, t: 64 + 16*(2*u + t)
    BF = lambda p, t: 160 + 20*p + 4*t; AF = lambda p, u: 168 + 20*p + 4*u
    a(f's_mul_i32 s28, s6, {2*SPS*1024}'); a(f'v_lshl_add_u32 v{BA(0)}, v0, 4, s28')
    a('s_mul_i32 s28, s7, 3072'); a(f's_add_u32 s28, s28, {BSZ}'); a(f'v_lshl_add_u32 v{AA(0)}, v0, 4, s28')
    for st in range(1, NSET):
        a(f'v_add_u32 v{BA(st)}, {0x10000*st}, v{BA(0)}'); a(f'v_add_u32 v{AA(st)}, {0x10000*st}, v{AA(0)}')
    a('v_and_b32 v2, 31, v0'); a('v_lshlrev_b32 v3, 4, v0')
    for t in range(2):
        a('s_lshl_b32 s28, s4, 2'); a('s_lshl_b32 s29, s6, 1'); a('s_add_u32 s28, s28, s29'); a(f's_add_u32 s28, s28, {t}')
        a('s_mul_i32 s28, s28, 96'); a('s_mul_i32 s29, s5, 6'); a('s_add_u32 s28, s28, s29')
        a('s_mul_i32 s29, s7, 3'); a('s_add_u32 s28, s28, s29'); a('s_lshl_b32 s28, s28, 10'); a(f's_add_u32 s{20+t}, s28, {GF}')
    for r in range(64, 160): a(f'v_mov_b32 v{r}, 0')
    def reads(g):
        st, i = g // SPS, g % SPS; p = g & 1
        slot = (st % R) * SLOT
        def ad(base, o):
            tot = slot + o
            return f'v{base(tot >> 16)} offset:{tot & 0xffff}'
        return [f'ds_read_b128 {vr(BF(p,0),4)}, {ad(BA, i*1024)}',
                f'ds_read_b128 {vr(AF(p,0),4)}, {ad(AA, i*6144)}',
                f'ds_read_b128 {vr(BF(p,1),4)}, {ad(BA, SPS*1024 + i*1024)}',
                f'ds_read_b128 {vr(AF(p,1),4)}, {ad(AA, i*6144 + 1024)}',
                f'ds_read_b128 {vr(AF(p,2),4)}, {ad(AA, i*6144 + 2048)}']
    def mm(u, t, p): return f'v_mfma_f32_32x32x16_bf16 {vr(ACC(u,t),16)}, {vr(AF(p,u),4)}, {vr(BF(p,t),4)}, {vr(ACC(u,t),16)}'
    a('s_barrier')
    for l in reads(0): a(l)
    for g in range(KS):
        p = g & 1
        rd = reads(g+1) if g + 1 < KS else []
        a('s_waitcnt lgkmcnt(0)')
        a(mm(0,0,p))
        if (g % SPS) == SPS - 1 and g + 1 < KS: a('s_barrier')
        for l in rd[0:2]: a(l)
        a(mm(0,1,p))
        for l in rd[2:4]: a(l)
        a(mm(1,0,p))
        for l in rd[4:5]: a(l)
        a(mm(1,1,p)); a(mm(2,0,p)); a(mm(2,1,p))
    a('s_lshl_b32 s28, s6, 8'); a(f's_add_u32 s28, s28, {RS}'); a('v_lshl_add_u32 v4, v2, 2, s28')
    for t in range(2):
        for k in range(3): a(f'ds_read_b32 v{16+6*t+2*k}, v4 offset:{t*128 + k*512}')
    a('s_waitcnt lgkmcnt(0)')
    T = 32
    for u in range(3):
        for t in range(2):
            A = ACC(u, t); C1 = 16+6*t; C2 = C1 + 2; C3 = C1 + 4
            prs = [(A, A+4), (A+2, A+6), (A+8, A+12), (A+10, A+14)]
            for k, (g, uu) in enumerate(prs): a(f'v_pk_mul_f32 {vr(T+2*k,2)}, {vr(g,2)}, {vr(g,2)}')
            for k, (g, uu) in enumerate(prs): a(f'v_pk_fma_f32 {vr(T+2*k,2)}, {vr(T+2*k,2)}, {vr(C2,2)}, {vr(C1,2)} op_sel_hi:[1,0,0]')
            for k, (g, uu) in enumerate(prs): a(f'v_pk_mul_f32 {vr(T+2*k,2)}, {vr(T+2*k,2)}, {vr(g,2)}')
            for k in range(8): a(f'v_exp_f32 v{T+k}, v{T+k}')
            for k, (g, uu) in enumerate(prs): a(f'v_pk_mul_f32 {vr(g,2)}, {vr(g,2)}, {vr(uu,2)}')
            for k in range(4): a(f'v_pk_fma_f32 {vr(T+2*k,2)}, {vr(T+2*k,2)}, {vr(C3,2)}, {vr(C3,2)} op_sel_hi:[1,0,0]')
            for k in range(8): a(f'v_rcp_f32 v{T+k}, v{T+k}')
            for k, (g, uu) in enumerate(prs): a(f'v_pk_mul_f32 {vr(g,2)}, {vr(g,2)}, {vr(T+2*k,2)}')
            for k, (g, uu) in enumerate(prs): a(f'v_cvt_pk_bf16_f32 v{A+4+k}, v{g}, v{g+1}')
            a(f'buffer_store_dwordx4 {vr(A+4,4)}, v3, s[8:11], s{20+t} offen offset:{1024*u}')
    a('s_endpgm')
    a.label(Lload)
    a('s_sub_u32 s3, s3, 4')
    a('v_lshlrev_b32 v2, 4, v0')
    a('s_lshl_b32 s28, s4, 2'); a('s_add_u32 s28, s28, s3'); a(f's_mul_i32 s20, s28, {40*1024}'); a(f's_add_u32 s20, s20, {HF}')
    a(f's_mul_i32 s21, s5, {40*6144}'); a(f's_add_u32 s21, s21, {WGF}')
    APW = 6 * SPS // 4 if (6 * SPS) % 4 == 0 else None
    assert APW
    a(f's_mul_i32 s29, s3, {APW*1024}'); a('s_add_u32 s21, s21, s29'); a(f's_add_u32 s23, s29, {BSZ}')
    a(f's_mul_i32 s22, s3, {SPS*1024}')
    a('v_and_b32 v3, 31, v0'); a('v_lshrrev_b32 v4, 5, v0'); a('v_lshlrev_b32 v5, 2, v3'); a('v_lshl_add_u32 v5, v4, 16, v5')
    a('s_lshl_b32 s28, s28, 7'); a(f's_add_u32 s28, s28, {SQP}')
    P = SPS + APW
    def issue(st):
        slot = (st % R) * SLOT
        a(f's_add_u32 s29, s20, {st*SPS*1024}'); a(f's_add_u32 m0, s22, {slot}')
        for k in range(SPS): a(f'buffer_load_dwordx4 v2, s[8:11], s29 offen offset:{1024*k} lds')
        for k0 in range(0, APW, 4):
            a(f's_add_u32 s29, s21, {st*ASZ + k0*1024}'); a(f's_add_u32 m0, s23, {slot + k0*1024}')
            for k in range(min(4, APW - k0)): a(f'buffer_load_dwordx4 v2, s[8:11], s29 offen offset:{1024*k} lds')
    seq = []
    issue(0); seq.append((0, P))
    for k in range(8):
        a(f'buffer_load_dword v{8+k}, v5, s[8:11], s28 offen'); a('s_add_u32 s28, s28, 8192')
    seq.append(('q', 8))
    for st in range(1, min(R, S)): issue(st); seq.append((st, P))
    for st in range(S):
        idx = [i for i, (t, c) in enumerate(seq) if t == st][0]
        after = sum(c for (t, c) in seq[idx+1:])
        assert after <= 63, after
        a(f's_waitcnt vmcnt({after})')
        a('s_barrier')
        if st >= 1 and st - 1 + R < S:
            issue(st - 1 + R); seq.append((st - 1 + R, P))
        if st == 1:
            for k in range(1, 8): a(f'v_add_f32 v8, v8, v{8+k}')
            a('v_mov_b32 v9, v8'); a('v_permlane32_swap_b32 v8, v9'); a('v_add_f32 v8, v8, v9')
            a(f'v_mov_b32 v9, {fl(1e-5)}'); a(f'v_fmac_f32 v9, {fl(1/640)}, v8')
            a('v_rsq_f32 v8, v9')
            c1 = -2 * 0.7978845608028654 * 1.4426950408889634
            a('v_mul_f32 v10, v8, v8'); a('v_mul_f32 v10, v10, v8')
            a(f'v_mul_f32 v8, {fl(c1)}, v8'); a(f'v_mul_f32 v10, {fl(c1*0.044715)}, v10')
            a('s_lshl_b32 s29, s3, 7'); a(f's_add_u32 s29, s29, {RS}'); a('v_lshl_add_u32 v6, v3, 2, s29')
            a('ds_write_b32 v6, v8'); a('ds_write_b32 v6, v10 offset:512'); a('ds_write_b32 v6, v9 offset:1024')
            a('s_waitcnt lgkmcnt(0)')
    a('s_endpgm')
    a.label(Lend)
    a('s_endpgm')
    return a.lines, 200, LDS
```

```python
import sys, importlib
import common
def make(path, wsbase=0, **o):
    common.WSBASE = wsbase
    import gen
    gen.build(path, o)
if __name__ == '__main__':
    make('v_base.s')
    make('v_nop1.s', extra=[1])
    make('v_nop5.s', extra=[1]*5)
    make('v_wsend.s', wsbase=(256<<20) - common.WS_SIZE)
    make('v_wsmid.s', wsbase=(128<<20))
```

```python
import sys
sys.path.insert(0, 'gen')
from asmlib import *
from asm import Asm, hazard_pass
def gen(mode, kb_per_wave, depth, fl=''):
    a = Asm()
    a('s_memrealtime s[60:61]')
    a('s_load_dwordx4 s[4:7], s[0:1], 0')
    a('v_lshrrev_b32 v1, 6, v0'); a('v_and_b32 v0, 63, v0'); a('v_readfirstlane_b32 s3, v1')
    a('v_lshlrev_b32 v2, 4, v0')
    a('s_waitcnt lgkmcnt(0)')
    a('s_mov_b32 s8, s6'); a('s_mov_b32 s9, s7'); a('s_mov_b32 s10, 0x4000000'); a('s_mov_b32 s11, 0x20000')
    WGB = kb_per_wave * 4 * 1024
    if mode == 'distinct':
        a(f's_mul_i32 s20, s2, {WGB}')
    elif mode == 'xcdshare':
        a('s_lshr_b32 s20, s2, 3'); a(f's_mul_i32 s20, s20, {WGB}')
    elif mode == 'share4':
        a('s_lshr_b32 s20, s2, 5'); a(f's_mul_i32 s20, s20, {WGB}')
    elif mode == 'inxcd4':
        a('s_lshr_b32 s20, s2, 5'); a('s_lshl_b32 s20, s20, 3'); a('s_and_b32 s21, s2, 7'); a('s_add_u32 s20, s20, s21'); a(f's_mul_i32 s20, s20, {WGB}')
    elif mode == 'half':
        a('s_lshr_b32 s20, s2, 5'); a('s_lshl_b32 s20, s20, 1'); a('s_and_b32 s21, s2, 1'); a('s_add_u32 s20, s20, s21'); a(f's_mul_i32 s20, s20, {WGB}')
    a('s_lshl_b32 s21, s3, 10'); a('s_add_u32 s20, s20, s21')
    a('s_lshl_b32 s22, s3, 10')
    for k in range(kb_per_wave):
        a(f's_add_u32 s28, s20, {k*4096}'); a(f's_add_u32 m0, s22, {(k % 32)*4096}')
        a(f'buffer_load_dwordx4 v2, s[8:11], s28 offen {fl} lds')
        if k == depth - 1:
            a(f's_waitcnt vmcnt({depth-1})'); a('s_memrealtime s[62:63]')
        if k >= depth: a(f's_waitcnt vmcnt({depth-1})')
        if k == depth + 6: a('s_memrealtime s[64:65]')
    a('s_waitcnt vmcnt(0)')
    a('s_memrealtime s[66:67]')
    a('s_waitcnt lgkmcnt(0)')
    a('s_lshl_b32 s11, s2, 3'); a('s_add_u32 s11, s11, s3'); a('s_lshl_b32 s11, s11, 7')
    a('v_mov_b32 v3, s11')
    for i in range(4):
        a(f'v_mov_b32 v4, s{60+2*i}'); a(f'global_store_dword v3, v4, s[4:5] offset:{4*i}'); a('s_nop 1')
    a('s_waitcnt vmcnt(0)'); a('s_endpgm')
    return "\n".join(l if l.endswith(':') else '    ' + l for l in hazard_pass(a.lines)) + "\n"
K = {}
for m in ['distinct', 'xcdshare']:
    K[m + '_16'] = gen(m, 48, 32) if False else gen(m, 16, 8)
for m in ['share4', 'inxcd4', 'half']:
    K[m + '_64_d32'] = gen(m, 64, 32)
    K[m + '_64_d16'] = gen(m, 64, 16)
K['share4_64_nt'] = gen('share4', 64, 32, 'nt')
K['share4_64_sc1'] = gen('share4', 64, 32, 'sc1')
bodies = {k + '_kernel': (v, 64, 64) for k, v in K.items()}
build_simple('mb12.s', bodies, ka=24)
open('mb12_names.txt', 'w').write("\n".join(bodies.keys()))
```
